```python
import torch

def _softmax(x, axis=-1):
    return torch.softmax(x, dim=axis)

def _gelu(x):
    return torch.nn.functional.gelu(x, approximate='tanh')

def _silu(x):
    return torch.nn.functional.silu(x)

def _sigmoid(x):
    return torch.sigmoid(x)

def _layernorm(x, axis=-1, eps=1e-05):
    m = x.mean(dim=axis, keepdim=True)
    v = x.var(dim=axis, keepdim=True, unbiased=False)
    return (x - m) / torch.sqrt(v + eps)

def _scatter_add(tgt, idx, src, axis=0):
    return tgt.clone().index_add_(axis, idx, src)

def _segment_sum(src, seg, n):
    out = torch.zeros((n,) + src.shape[1:], dtype=src.dtype)
    return out.index_add_(0, seg, src)

def _pad(x, pw):
    flat = tuple((v for pair in reversed(pw) for v in pair))
    return torch.nn.functional.pad(x, flat)
kernel_name = 'adaLN_cond__ssm_conv_h3__dense_activation_squared_relu__prompt'

def setup_inputs():

    _w = lambda a: (lambda t: t.to(torch.bfloat16) if t.is_floating_point() else t)(torch.as_tensor(a))

    def _A_setup():
        B, S, D = (1, 2048, 512)
        ks = 4
        return {'q': _w((lambda *s: torch.randn(*s, dtype=torch.bfloat16) * 0.05)(B, S, D)), 'k': _w((lambda *s: torch.randn(*s, dtype=torch.bfloat16) * 0.8)(B, S, D)), 'v': _w((lambda *s: torch.randn(*s, dtype=torch.bfloat16) * 0.8)(B, S, D)), 'shift_k': _w((lambda *s: torch.randn(*s, dtype=torch.bfloat16) * 0.8)(D, ks) * 0.5), 'ssm_k': _w((lambda *s: torch.randn(*s, dtype=torch.bfloat16) * 0.8)(D, S) * (1.0 / S ** 0.5)), 'ssm_D': _w((lambda *s: torch.randn(*s, dtype=torch.bfloat16) * 0.8)(D))}
    _A_in = _A_setup()

    def _B_setup():
        B, S, D, F = (1, 2048, 512, 1376)
        return {'x': _w((lambda *s: torch.randn(*s, dtype=torch.bfloat16) * 0.05)(B, S, D)), 'w1': _w((lambda *s: torch.randn(*s, dtype=torch.bfloat16) * 0.05)(D, F)), 'b1': _w((lambda *s: torch.randn(*s, dtype=torch.bfloat16) * 0.4)(F)), 'w2': _w((lambda *s: torch.randn(*s, dtype=torch.bfloat16) * 0.05)(F, D)), 'b2': _w((lambda *s: torch.randn(*s, dtype=torch.bfloat16) * 3.2)(D))}
    _B_in = _B_setup()
    return {'A_q': _A_in['q'], 'A_k': _A_in['k'], 'A_v': _A_in['v'], 'A_shift_k': _A_in['shift_k'], 'A_ssm_k': _A_in['ssm_k'], 'A_ssm_D': _A_in['ssm_D'], 'B_x': _B_in['x'], 'B_w1': _B_in['w1'], 'B_b1': _B_in['b1'], 'B_w2': _B_in['w2'], 'B_b2': _B_in['b2'], 'c': _w((lambda *s: torch.randn(*s, dtype=torch.bfloat16) * 0.1)(1, 512) * 8.0), 'w_mod': _w((lambda *s: torch.randn(*s, dtype=torch.bfloat16) * 0.1)(512, 6 * 512) * 512 ** (-0.5) * 8.0)}

def reference(A_q, A_k, A_v, A_shift_k, A_ssm_k, A_ssm_D, B_x, B_w1, B_b1, B_w2, B_b2, c, w_mod):

    def _A_ref(q, k, v, shift_k, ssm_k, ssm_D):
        B, S, D = q.shape
        ks = shift_k.shape[-1]
        k_pad = _pad(k, ((0, 0), (ks - 1, 0), (0, 0)))
        k_shift = torch.zeros_like(k)
        for t in range(ks):
            k_shift = k_shift + k_pad[:, t:t + S, :] * shift_k[:, ks - 1 - t][None, None, :]
        kv = k_shift * v
        L = 2 * S
        kv_pad = _pad(kv, ((0, 0), (0, S), (0, 0)))
        kf_pad = _pad(ssm_k, ((0, 0), (0, S)))
        kv_f = (lambda x, axes=(-2, -1): torch.fft.rfft2(x.float(), dim=axes))(kv_pad[:, None, :, :], axes=(1, 2))
        kf_f = (lambda x, axes=(-2, -1): torch.fft.rfft2(x.float(), dim=axes))(kf_pad[:, None, :], axes=(1, 2))
        kf_f = (lambda x, *d: x.permute(*d))(kf_f, 1, 2, 0)
        y_f = kv_f * kf_f[None, :, :, :]
        y = (lambda x, s, axes=(-2, -1): torch.fft.irfft2(x, s=s, dim=axes).to(torch.bfloat16))(y_f, (1, L), axes=(1, 2))[:, 0, :S, :]
        y = y + kv * ssm_D[None, None, :]
        return q * y

    def _B_ref(x, w1, b1, w2, b2):
        h = torch.einsum('bsd,df->bsf', x, w1) + b1
        zero = torch.zeros_like(h)
        r = torch.where(h > zero, h, zero)
        h = r * r
        out = torch.einsum('bsf,fd->bsd', h, w2) + b2
        return out
    x = A_q
    mod = (_silu(c) @ w_mod).reshape(c.shape[0], 6, 1, -1)
    sa, ca, ga, sb, cb, gb = (mod[:, 0].clone(), mod[:, 1].clone(), mod[:, 2].clone(), mod[:, 3].clone(), mod[:, 4].clone(), mod[:, 5].clone())
    h = _layernorm(x, axis=-1) * (1 + ca) + sa
    x = x + ga * _A_ref(h, A_k, A_v, A_shift_k, A_ssm_k, A_ssm_D)
    h = _layernorm(x, axis=-1) * (1 + cb) + sb
    x = x + gb * _B_ref(h, B_w1, B_b1, B_w2, B_b2)
    return x
```

```python
import re

REG_RE = re.compile(r'^-?(?:abs\()?\|?([vas])(\d+)\)?\|?$')
RNG_RE = re.compile(r'^-?([vas])\[(\d+):(\d+)\]$')

def regs_of(tok):
    tok = tok.strip()
    m = REG_RE.match(tok)
    if m: return [(m.group(1), int(m.group(2)))]
    m = RNG_RE.match(tok)
    if m: return [(m.group(1), i) for i in range(int(m.group(2)), int(m.group(3)) + 1)]
    if tok == 'vcc': return [('s', 'vcc_lo'), ('s', 'vcc_hi')]
    if tok in ('vcc_lo', 'vcc_hi', 'm0'): return [('s', tok)]
    if tok == 'exec': return [('s', 'exec')]
    return []

TRANS = ('v_exp_f32', 'v_log_f32', 'v_rcp_f32', 'v_rsq_f32', 'v_sqrt_f32', 'v_sin_f32', 'v_cos_f32')

class Ins:
    __slots__ = ('text', 'op', 'dst', 'src', 'cls', 'passes', 'srcC', 'dpp', 'ws', 'lds_dma', 'wide_store', 'srcAB')

def parse(text):
    I = Ins(); I.text = text
    t = text.split(';')[0].strip()
    parts = t.split(None, 1)
    op = parts[0]; I.op = op
    rest = parts[1] if len(parts) > 1 else ''
    ops = []; cur = ''; depth = 0
    for ch in rest:
        if ch == '[': depth += 1
        if ch == ']': depth -= 1
        if ch == ',' and depth == 0: ops.append(cur.strip()); cur = ''
        else: cur += ch
    if cur.strip(): ops.append(cur.strip())
    mods = ''
    if ops:
        last = ops[-1].split(None, 1)
        ops[-1] = last[0]
        mods = last[1] if len(last) > 1 else ''
    I.dst = []; I.src = []; I.passes = 0; I.srcC = []; I.srcAB = []; I.dpp = False; I.ws = 1; I.lds_dma = False; I.wide_store = False
    R = [regs_of(o) for o in ops]
    flat = lambda L: [x for l in L for x in l]
    if op == 's_nop':
        I.cls = 'nop'; I.ws = int(ops[0], 0) + 1
    elif op.startswith('v_mfma'):
        I.cls = 'mfma'; I.dst = R[0]; I.src = flat(R[1:]); I.srcC = R[3]; I.srcAB = R[1] + R[2]
        I.passes = 8 if '32x32x16' in op else 4
    elif op.startswith('v_'):
        I.cls = 'trans' if op.replace('_e32', '').replace('_e64', '') in TRANS else 'valu'
        I.dpp = ('row_' in mods or 'quad_perm' in mods or 'wave_' in mods or '_dpp' in op)
        if op.startswith('v_cmp'):
            I.dst = R[0]; I.src = flat(R[1:])
        elif op.startswith('v_permlane') or op.startswith('v_swap'):
            I.dst = flat(R); I.src = flat(R)
        elif op.startswith(('v_add_co', 'v_sub_co', 'v_addc_co', 'v_subb_co')):
            I.dst = R[0] + R[1]; I.src = flat(R[2:])
        else:
            I.dst = R[0]; I.src = flat(R[1:])
            if op.startswith(('v_fmac', 'v_dot2c', 'v_pk_fmac')) or I.dpp or op.startswith('v_writelane'):
                I.src = I.src + R[0]
            if op.startswith('v_cndmask') and len(ops) == 3: I.src += regs_of('vcc')
    elif op.startswith('ds_'):
        I.cls = 'ds'
        if op.startswith(('ds_read', 'ds_bpermute', 'ds_permute', 'ds_swizzle')):
            I.dst = R[0]; I.src = flat(R[1:])
            if 'd16' in op: I.src = I.src + R[0]
        else:
            I.src = flat(R)
    elif op.startswith(('buffer_', 'global_')):
        I.cls = 'vmem'
        allm = mods + ' ' + ' '.join(ops)
        if op in ('buffer_inv', 'buffer_wbl2'):
            pass
        elif ('load' in op and (re.search(r'\blds\b', mods) or '_lds_' in op)):
            I.lds_dma = True; I.src = flat(R) + [('s', 'm0')]
        elif 'load' in op:
            I.dst = R[0]; I.src = flat(R[1:])
            if 'd16' in op: I.src = I.src + R[0]
        elif 'atomic' in op and 'sc0' in mods:
            I.dst = R[0]; I.src = flat(R)
        else:
            I.src = flat(R)
            if op.endswith(('x3', 'x4')):
                I.wide_store = True
                I.srcC = R[0] if op.startswith('buffer_') else R[1]
    elif op.startswith(('s_load', 's_buffer_load', 's_memtime', 's_memrealtime')):
        I.cls = 'smem'; I.dst = R[0]; I.src = flat(R[1:])
    elif op.startswith('s_'):
        I.cls = 'salu'
        if op.startswith(('s_cmp', 's_bitcmp', 's_cbranch', 's_branch', 's_waitcnt', 's_barrier', 's_endpgm', 's_setprio', 's_sleep', 's_setreg')):
            I.src = flat(R)
        else:
            I.dst = R[0] if R else []; I.src = flat(R[1:])
            if 'saveexec' in op: I.dst = I.dst + [('s', 'exec')]
    else:
        raise ValueError('unknown instr: ' + text)
    return I

def need_ws(P, I):
    n = 0
    Pd = set(P.dst)
    isvalu = lambda x: x.cls in ('valu', 'trans')
    if isvalu(P):
        vd = {r for r in Pd if r[0] in 'va'}
        sd = {r for r in Pd if r[0] == 's'}
        if vd:
            hit = vd & set(I.src)
            if hit:
                if I.cls == 'mfma': n = max(n, 2)
                if isvalu(I) and I.dpp: n = max(n, 2)
                if I.op.startswith(('v_readlane', 'v_readfirstlane')): n = max(n, 1)
                if I.op.startswith('v_permlane'): n = max(n, 2)
                if P.cls == 'trans' and I.cls in ('valu', 'mfma', 'vmem', 'ds'): n = max(n, 1)
        if sd and sd & set(I.src):
            if isvalu(I): n = max(n, 4 if I.op.startswith(('v_readlane', 'v_writelane')) else 2)
            if I.cls == 'vmem': n = max(n, 5)
            if I.cls in ('salu', 'smem'): n = max(n, 1)
    if P.cls == 'mfma':
        big = P.passes == 8
        if I.cls == 'mfma':
            if Pd & set(I.srcAB): n = max(n, 12 if big else 8)
            if Pd & set(I.srcC):
                if not (I.srcC == P.dst and I.passes == P.passes): n = max(n, 10 if big else 6)
            elif Pd & set(I.dst): n = max(n, 12 if big else 8)
        else:
            if Pd & (set(I.src) | set(I.dst)): n = max(n, 12 if big else 8)
            if isvalu(I) and set(P.srcC) & set(I.dst): n = max(n, 7 if big else 3)
    if P.cls == 'salu' and ('s', 'm0') in Pd and I.lds_dma: n = max(n, 1)
    if P.wide_store and set(P.srcC) & set(I.dst): n = max(n, 2)
    return n

class Kern:
    def __init__(self, name):
        self.name = name; self.items = []
    def e(self, s, tag=None):
        for line in s.strip('\n').split('\n'):
            line = line.strip()
            if line: self.items.append(line + (f' ;@tag={tag}' if tag else ''))
    def wait_tag(self, tag): self.items.append('@wait_tag ' + tag)
    def label(self, l): self.items.append(l + ':')
    def flush(self): self.items.append('@flush')
    STAMPS = False
    kidx = 0
    wsreg = 16
    nst = 8
    STAMPMAP = None
    def stamp(self, i):
        if not Kern.STAMPS: return
        if Kern.STAMPMAP is not None and i not in (0, 7, 99):
            if i not in Kern.STAMPMAP: return
            i = 1 + Kern.STAMPMAP.index(i)
        if i == 99: i = 7
        self.e(f's_memrealtime s[{84+2*i}:{85+2*i}]')
        import os
        if os.environ.get('CLK') and i in (1, 3, 5): self.e(f's_memtime s[{86+2*i}:{87+2*i}]')
    def stamp_init(self):
        if Kern.STAMPS:
            for i in range(84, 100): self.e(f's_mov_b32 s{i}, 0')
            self.stamp(0)
            self.e('v_lshrrev_b32 v1, 6, v0')
            self.e('v_readfirstlane_b32 s83, v1')
    def end(self):
        if Kern.STAMPS:
            self.e('s_waitcnt vmcnt(0) lgkmcnt(0)')
            self.stamp(99)
            self.e('s_mov_b64 exec, 1')
            self.e(f's_add_u32 s76, s{self.wsreg}, {32*1048576 + self.kidx*262144}')
            self.e(f's_addc_u32 s77, s{self.wsreg+1}, 0')
            self.e('s_mov_b32 s78, 262144')
            self.e('s_mov_b32 s79, 0x20000')
            self.e('s_lshl_b32 s80, s2, 2')
            self.e('s_add_u32 s80, s80, s83')
            self.e('s_lshl_b32 s80, s80, 5')
            self.e('s_waitcnt lgkmcnt(0)')
            for i in range(8): self.e(f'v_mov_b32 v{8+i}, s{84+2*i}')
            self.e('v_mov_b32 v0, 0')
            self.e('buffer_store_dwordx4 v[8:11], v0, s[76:79], s80 offen')
            self.e('buffer_store_dwordx4 v[12:15], v0, s[76:79], s80 offen offset:16')
        self.e('s_endpgm')

    def finalize(self):
        out = []; hist = []
        vmq = []; lgq = []
        def emit(text):
            I = parse(text); out.append('    ' + text); hist.append(I)
            if len(hist) > 24: hist.pop(0)
            return I
        def flush_haz():
            d = 0; need = 0
            for P in reversed(hist):
                if P.cls == 'mfma': need = max(need, (12 if P.passes == 8 else 8) - d)
                elif P.cls in ('valu', 'trans'): need = max(need, 5 - d)
                elif P.wide_store: need = max(need, 2 - d)
                elif P.cls == 'salu': need = max(need, 1 - d)
                d += P.ws
            if need > 0: emit(f's_nop {need - 1}')
        for it in self.items:
            if it.startswith(';'):
                out.append('    ' + it); continue
            if it.startswith('@mark'):
                vmq.append((set(), False, it.split()[1])); continue
            if it.startswith('@wait_tag'):
                tg = it.split()[1]; idx = None
                for i_, ent in enumerate(vmq):
                    if len(ent) > 2 and ent[2] == tg: idx = i_
                if idx is not None:
                    n_ = min(len(vmq) - 1 - idx, 63)
                    emit(f's_waitcnt vmcnt({n_})')
                    while len(vmq) > n_: vmq.pop(0)
                continue
            if it.endswith(': ;@keep'):
                flush_haz(); out.append(it.split()[0]); hist.clear(); continue
            if it == '@flush' or it.endswith(':'):
                if any(e_[0] for e_ in vmq): emit('s_waitcnt vmcnt(0)'); vmq.clear()
                if lgq: emit('s_waitcnt lgkmcnt(0)'); lgq.clear()
                flush_haz()
                if it != '@flush': out.append(it); hist.clear(); vmq.clear(); lgq.clear()
                continue
            I = parse(it)
            if I.op.startswith(('s_cbranch', 's_branch')):
                if '@nowait' not in it:
                    if any(e_[0] for e_ in vmq): emit('s_waitcnt vmcnt(0)'); vmq.clear()
                    if lgq: emit('s_waitcnt lgkmcnt(0)'); lgq.clear()
                flush_haz()
            if I.op == 's_waitcnt' and '@raw' in it:
                emit(it); continue
            if I.op == 's_waitcnt':
                m = re.search(r'vmcnt\((\d+)\)', it)
                if m:
                    k = int(m.group(1))
                    while len(vmq) > k: vmq.pop(0)
                m = re.search(r'lgkmcnt\((\d+)\)', it)
                if m:
                    k = int(m.group(1))
                    if k == 0: lgq.clear()
                    elif not any(s for _, s in lgq):
                        while len(lgq) > k: lgq.pop(0)
                emit(it); continue
            touched = set(I.src) | set(I.dst)
            wv = None; wl = None
            for idx, ent in enumerate(vmq):
                d = ent[0]
                if d & touched: wv = len(vmq) - 1 - idx
            for idx, (d, s) in enumerate(lgq):
                if d & touched: wl = len(lgq) - 1 - idx
            if wl is not None and any(s for _, s in lgq): wl = 0
            if wv is not None or wl is not None:
                w = 's_waitcnt'
                if wv is not None:
                    wv = min(wv, 63); w += f' vmcnt({wv})'
                    while len(vmq) > wv: vmq.pop(0)
                if wl is not None:
                    wl = min(wl, 15); w += f' lgkmcnt({wl})'
                    while len(lgq) > wl: lgq.pop(0)
                emit(w)
            d = 0; need = 0
            for P in reversed(hist):
                need = max(need, need_ws(P, I) - d)
                d += P.ws
                if d > 13: break
            if need > 0: emit(f's_nop {need - 1}')
            emit(it)
            if '@nocount' in it: pass
            elif I.cls == 'vmem' and I.op not in ('buffer_inv', 'buffer_wbl2') or I.op in ('buffer_inv', 'buffer_wbl2'):
                mt_ = re.search(r';@tag=(\w+)', it)
                vmq.append((set(I.dst), False, mt_.group(1) if mt_ else None))
            elif I.cls == 'ds': lgq.append((set(I.dst), False))
            elif I.cls == 'smem': lgq.append((set(I.dst), True))
        return out

def v(i, n=1): return f'v{i}' if n == 1 else f'v[{i}:{i+n-1}]'
def a(i, n=1): return f'a{i}' if n == 1 else f'a[{i}:{i+n-1}]'
def s(i, n=1): return f's{i}' if n == 1 else f's[{i}:{i+n-1}]'

def descriptor(name, vgpr, sgpr, accum):
    return f""".p2align 6
.amdhsa_kernel {name}
  .amdhsa_next_free_vgpr {vgpr}
  .amdhsa_next_free_sgpr {sgpr}
  .amdhsa_accum_offset {accum}
  .amdhsa_group_segment_fixed_size 0
  .amdhsa_kernarg_size 128
  .amdhsa_user_sgpr_count 2
  .amdhsa_user_sgpr_kernarg_segment_ptr 1
  .amdhsa_system_sgpr_workgroup_id_x 1
  .amdhsa_float_denorm_mode_32 3
  .amdhsa_float_denorm_mode_16_64 3
.end_amdhsa_kernel
"""
```

```python
MB = 1 << 20
WS_KVP = 0
WS_QT = 2 * MB
WS_X1T = 4 * MB
WS_X1R = 6 * MB
WS_HP = 8 * MB
WS_W1P = 14 * MB
WS_W2P = 16 * MB
WS_MODP = 18 * MB
WS_ST1 = 18 * MB + 65536
WS_UT = 18 * MB + 131072
WS_GB = 18 * MB + 196608
```

```python
from asmgen import *
from layout import *

NAME = 'adaLN_cond__ssm_conv_h3__dense_activation_squared_relu__prompt_kernel'
SCL = ''
SC = 'sc1'
EXACT = True
EX_KV = True; EX_X1 = True; EX_OUT = True
MAPB = False
W2_EARLY = 12
PREFETCH_CODE = True
G_EARLY = 2
CODE_LAST_CHUNK = 0x4000
W1_PACE = 3
F2_STAGE = 8
W1_BEFORE_F3 = 4
W2_SKIP = 6
H_AHEAD = 5
L_H = 0; L_X = 8320; L_O = 16896; TQS = 2176
L_KVT = 34304; L_QT = 43520; L_WM = 51712; L_SC = 68096; L_W2R = 69120; L_W1R = 77312; L_CS = 85504
X1BASE = 0
L_XT = 0; L_ST = 65536; L_RED = 66048; LDS_BYTES = 115200
WS_TP = 18 * MB + 262144
WS_FL = 19 * MB
WS_SIZE = 20 * MB
BIG = '0x7ff00000'
P_Q, P_K, P_V, P_SK, P_SSM, P_D, P_W1, P_B1, P_W2, P_B2, P_C, P_WM, P_OUT, P_DBG, P_WS = 8, 10, 12, 14, 16, 18, 22, 24, 26, 28, 30, 32, 34, 36, 38
WS = 's[40:43]'; T1, T2, T3, T4 = 44, 48, 52, 56
NONCE = 60
W = 's4'; MASK = 's5'

def srd(k, base, ptr, size):
    k.e(f's_mov_b32 {s(base)}, {s(ptr)}'); k.e(f's_mov_b32 {s(base+1)}, {s(ptr+1)}')
    k.e(f's_mov_b32 {s(base+2)}, {size}'); k.e(f's_mov_b32 {s(base+3)}, 0x20000')
def S4(b): return s(b, 4)
def rnd(k, r): k.e(f'v_cvt_pk_bf16_f32 {v(r)}, 0, {v(r)}')
def R2(r): return [f'v_cvt_pk_bf16_f32 {v(r)}, 0, {v(r)}', f'v_cvt_pk_bf16_f32 {v(r+1)}, 0, {v(r+1)}']
def unpack(dst, src): return [f'v_lshlrev_b32 {v(dst)}, 16, {v(src)}', f'v_and_b32 {v(dst+1)}, {MASK}, {v(src)}']

_lbl = [0]
FL_0W = 5; FL_Q = 9
def set_flag_wave(phase, vt):
    return '\n'.join(['s_lshl_b32 s3, s2, 2', f's_add_u32 s3, s3, {W}', 's_lshl_b32 s3, s3, 6', f's_add_u32 s3, s3, {WS_FL + phase*16384}',
        f'v_mov_b32 {v(vt)}, s{NONCE}', f'v_mov_b32 {v(vt+1)}, s{NONCE+1}', f'v_mov_b32 {v(vt+2)}, 0', 's_mov_b64 exec, 1',
        f'buffer_store_dwordx2 {v(vt,2)}, {v(vt+2)}, {WS}, s3 offen {SC}', 's_mov_b64 exec, -1'])

def set_flag(k, phase, vt):
    _lbl[0] += 1; L = f'SF{_lbl[0]}'
    k.e(f's_cmp_eq_u32 {W}, 0')
    k.e('s_cselect_b64 exec, 1, 0')
    k.e(f's_lshl_b32 s3, s2, 6')
    k.e(f's_add_u32 s3, s3, {WS_FL + phase*16384}')
    k.e(f'v_mov_b32 {v(vt)}, s{NONCE}'); k.e(f'v_mov_b32 {v(vt+1)}, s{NONCE+1}'); k.e(f'v_mov_b32 {v(vt+2)}, 0')
    k.e('s_cbranch_execz ' + L + ' ;@nowait')
    k.e(f'buffer_store_dwordx2 {v(vt,2)}, {v(vt+2)}, {WS}, s3 offen {SC} ;@nocount')
    k.e(L + ': ;@keep')
    k.e('s_mov_b64 exec, -1')

def _poll_loads(phase, vaddr, vt, n, nlanes, extra=''):
    o = []
    if nlanes < 64: o.append(f's_mov_b64 exec, {hex((1 << nlanes) - 1)}')
    for i in range(n):
        o.append(f's_mov_b32 s6, {WS_FL + phase*16384 + 4096*i}')
        o.append(f'buffer_load_dwordx2 {v(vt+2*i,2)}, {v(vaddr)}, {WS}, s6 offen {SC}{extra}')
    if nlanes < 64: o.append('s_mov_b64 exec, -1')
    return o
def poll_issue(k, phase, vaddr, vt, n=1, nlanes=64):
    k.e('\n'.join(_poll_loads(phase, vaddr, vt, n, nlanes)))
def poll_wait(k, phase, vaddr, vt, n=1, nlanes=64):
    _lbl[0] += 1; L = f'PL{_lbl[0]}'
    k.e('s_mov_b32 s7, 0')
    k.e(L + ': ;@keep')
    k.e(f'v_cmp_ne_u64 vcc, s[{NONCE}:{NONCE+1}], {v(vt,2)}')
    for i in range(1, n):
        k.e(f'v_cmp_ne_u64 s[70:71], s[{NONCE}:{NONCE+1}], {v(vt+2*i,2)}')
        k.e('s_or_b64 vcc, vcc, s[70:71]')
    if nlanes < 64: k.e(f's_and_b64 vcc, vcc, {hex((1 << nlanes) - 1)}')
    k.e('s_add_u32 s7, s7, 1')
    k.e('s_cmp_gt_u32 s7, 20000')
    k.e('s_cselect_b64 vcc, 0, vcc')
    k.e('s_cmp_eq_u64 vcc, 0')
    k.e(f's_cbranch_scc1 {L}D ;@nowait')
    k.e('\n'.join(_poll_loads(phase, vaddr, vt, n, nlanes, ' ;@nocount')))
    k.e('s_waitcnt vmcnt(0) ;@raw')
    k.e(f's_branch {L} ;@nowait')
    k.e(L + 'D: ;@keep')
def poll(k, phase, vaddr, vt, n=1, nlanes=64):
    poll_issue(k, phase, vaddr, vt, n, nlanes); poll_wait(k, phase, vaddr, vt, n, nlanes)

def wave_reduce_sum(r, sdst):
    o = [f'v_add_f32_dpp {v(r)}, {v(r)}, {v(r)} row_shr:{sh} row_mask:0xf bank_mask:0xf' for sh in (1, 2, 4, 8)]
    o += [f'v_add_f32_dpp {v(r)}, {v(r)}, {v(r)} row_bcast:15 row_mask:0xa bank_mask:0xf',
          f'v_add_f32_dpp {v(r)}, {v(r)}, {v(r)} row_bcast:31 row_mask:0xc bank_mask:0xf',
          f'v_readlane_b32 {s(sdst)}, {v(r)}, 63']
    return o
def ilv(*lists):
    out = []; n = max(len(l) for l in lists)
    for i in range(n):
        for l in lists:
            if i < len(l): out.append(l[i])
    return out

V_L = 2; V_G = 3; V_R = 4; V_C = 5; V_L16 = 6

def srd_l(base, ptr, size):
    return [f's_mov_b32 {s(base)}, {s(ptr)}', f's_mov_b32 {s(base+1)}, {s(ptr+1)}', f's_mov_b32 {s(base+2)}, {size}', f's_mov_b32 {s(base+3)}, 0x20000']

def phase1(k):
    e = k.e
    e('; ================= phase 1 =================')
    e(f'v_and_b32 {v(V_L)}, 63, v0'); e(f'v_lshrrev_b32 {v(V_G)}, 4, {v(V_L)}'); e(f'v_bfe_u32 {v(V_R)}, v0, 2, 2')
    e(f'v_and_b32 {v(V_C)}, 3, v0'); e(f'v_lshlrev_b32 {v(V_L16)}, 4, {v(V_L)}')
    e('v_and_b32 v7, 7, v0')
    e(f'v_lshrrev_b32 v8, 3, {v(V_L)}')
    if PREFETCH_CODE:
        e('s_getpc_b64 s[6:7]')
        e('s_lshr_b32 s3, s2, 3'); e('s_and_b32 s3, s3, 7'); e('s_lshl_b32 s3, s3, 2'); e(f's_add_u32 s3, s3, {W}'); e('s_lshl_b32 s3, s3, 10')
        e(f's_min_u32 s3, s3, {CODE_LAST_CHUNK}')
        e(f'v_add_u32 v9, s3, {v(V_L16)}')
        e('global_load_dwordx4 v[252:255], v9, s[6:7]')
    e('s_lshr_b32 s62, s2, 2')
    e('s_and_b32 s63, s2, 3')
    e('s_lshr_b32 s66, s2, 3')
    e('s_and_b32 s67, s2, 7')
    e('v_mul_u32_u24 v9, 6144, v8'); e('v_lshl_add_u32 v9, v7, 4, v9')
    e('s_lshl_b32 s64, s63, 2'); e(f's_add_u32 s64, s64, {W}'); e(f's_mul_i32 s64, s64, {32*6144}')
    e('s_lshl_b32 s65, s62, 7'); e('s_add_u32 s64, s64, s65')
    e(f's_lshl_b32 s65, {W}, 12'); e(f's_add_u32 s65, s65, {L_WM}')
    e(f'v_lshlrev_b32 v10, 2, {v(V_L)}')
    e('s_lshl_b32 s68, s66, 16'); e('s_lshl_b32 s69, s67, 7'); e('s_add_u32 s68, s68, s69'); e('s_sub_u32 s68, s68, 3072')
    e('v_lshrrev_b32 v12, 3, v0')
    e('v_lshlrev_b32 v13, 11, v12'); e('v_lshl_add_u32 v13, v7, 4, v13'); e('v_add_u32 v13, s68, v13')
    e('v_add_u32 v14, 0x400, v13'); e('v_add_u32 v15, 0x800, v13'); e('v_add_u32 v16, 0xc00, v13')
    e('v_lshlrev_b32 v17, 6, v7')
    e('s_waitcnt lgkmcnt(0)')
    k.stamp(1)
    srd(k, T1, P_WM, 3 * MB)
    for i in range(4):
        e('s_mov_b32 m0, s65')
        e(f'buffer_load_dwordx4 v9, {S4(T1)}, s64 offen lds', tag='wm')
        if i < 3: e(f's_add_u32 s64, s64, {8*6144}'); e('s_add_u32 s65, s65, 1024')
    srd(k, T2, P_C, 1024)
    e('s_lshl_b32 s64, s63, 8')
    e(f'buffer_load_dword v11, v10, {S4(T2)}, s64 offen')
    srd(k, T1, P_K, 2 * MB); srd(k, T2, P_V, 2 * MB); srd(k, T3, P_SK, 4096)
    KR = 128; VR = 148; WR = 156; SR = 172
    e('s_lshl_b32 s64, s67, 9')
    for j in range(4): e(f'buffer_load_dwordx4 {v(WR+4*j,4)}, v17, {S4(T3)}, s64 offen offset:{16*j}')
    e(f'buffer_load_dwordx4 {v(KR+0,4)}, v13, {S4(T1)}, 0 offen')
    e(f'buffer_load_dwordx4 {v(KR+4,4)}, v14, {S4(T1)}, 0 offen')
    e(f'buffer_load_dwordx4 {v(KR+8,4)}, v15, {S4(T1)}, 0 offen')
    e(f'buffer_load_dwordx4 {v(KR+12,4)}, v16, {S4(T1)}, 0 offen')
    e(f'buffer_load_dwordx4 {v(KR+16,4)}, v16, {S4(T1)}, 0 offen offset:1024')
    e(f'buffer_load_dwordx4 {v(VR,4)}, v16, {S4(T2)}, 0 offen')
    e(f'buffer_load_dwordx4 {v(VR+4,4)}, v16, {S4(T2)}, 0 offen offset:1024')
    e(f's_mov_b32 s40, s{P_WS}'); e(f's_mov_b32 s41, s{P_WS+1}'); e(f's_mov_b32 s42, {WS_SIZE}'); e('s_mov_b32 s43, 0x20000')
    srd(k, T4, P_DBG, 256)
    e(f's_or_b32 s3, s2, {W}')
    e('s_cmp_lg_u32 s3, 0')
    e('s_cbranch_scc1 NONCE_SKIP ;@nowait')
    e('s_memrealtime s[60:61]')
    e('s_waitcnt lgkmcnt(0)')
    e('s_or_b32 s60, s60, 1')
    e('v_mov_b32 v20, s60'); e('v_mov_b32 v21, s61'); e('v_mov_b32 v22, 0')
    e('s_mov_b64 exec, 1')
    e(f'buffer_store_dwordx2 v[20:21], v22, {S4(T4)}, 0 offen {SC} ;@nocount')
    e('s_mov_b64 exec, -1')
    e('NONCE_SKIP: ;@keep')
    k.stamp(2)
    e('s_lshl_b32 s3, s2, 2'); e(f's_add_u32 s6, s{P_D}, s3'); e(f's_addc_u32 s7, s{P_D+1}, 0')
    e('s_load_dword s81, s[6:7], 0')
    e('v_lshlrev_b32 v100, 17, v8'); e('v_lshl_add_u32 v100, v7, 4, v100')
    e('v_lshlrev_b32 v101, 10, v8'); e('v_lshl_add_u32 v101, v7, 4, v101')
    e(f'v_lshrrev_b32 v102, 2, {v(V_L)}'); e('v_mul_u32_u24 v102, 2752, v102'); e(f'v_lshl_add_u32 v102, {v(V_C)}, 4, v102')
    G = []
    G.append(srd_l(T1, P_W1, 512 * 2752) + ['s_lshl_b32 s64, s67, 2', f's_add_u32 s64, s64, {W}', f's_mul_i32 s64, s64, {16*2752}',
        's_lshl_b32 s65, s66, 6', 's_add_u32 s64, s64, s65', f's_lshl_b32 s65, {W}, 10', f's_add_u32 s65, s65, {L_W1R}', 's_mov_b32 m0, s65',
        f'buffer_load_dwordx4 v102, {S4(T1)}, s64 offen lds'])
    G.append(['s_add_u32 s64, s64, 2048', 's_add_u32 s65, s65, 4096', 's_mov_b32 m0, s65', f'buffer_load_dwordx4 v102, {S4(T1)}, s64 offen lds'])
    e('s_and_b32 s72, s2, 31'); e('s_lshr_b32 s73, s2, 5'); e('s_lshl_b32 s74, s72, 3'); e('s_add_u32 s74, s74, s73')
    G.append(srd_l(T2, P_Q, 2 * MB) + ['s_lshr_b32 s64, s74, 1', 's_and_b32 s65, s74, 1', 's_lshl_b32 s65, s65, 3', f's_lshl_b32 s68, {W}, 1',
        's_add_u32 s65, s65, s68', 's_lshl_b32 s65, s65, 7', 's_add_u32 s65, s65, s64', 's_lshl_b32 s65, s65, 10',
        f'buffer_load_dwordx4 {v(SR,4)}, {v(V_L16)}, {S4(T2)}, s65 offen'])
    G.append(['s_add_u32 s64, s65, 0x20000', f'buffer_load_dwordx4 {v(SR+4,4)}, {v(V_L16)}, {S4(T2)}, s64 offen'])
    G.append(srd_l(T1, P_SSM, 2 * MB) + ['s_lshl_b32 s64, s2, 13', f's_lshl_b32 s65, {W}, 11', 's_add_u32 s64, s64, s65', f's_lshr_b32 s68, {W}, 1',
        's_lshl_b32 s68, s68, 6', 's_add_u32 s65, s65, s68', f's_add_u32 s65, s65, {L_H+64}', 's_mov_b32 m0, s65',
        f'buffer_load_dwordx4 {v(V_L16)}, {S4(T1)}, s64 offen lds'])
    G.append([f'buffer_load_dwordx4 {v(V_L16)}, {S4(T1)}, s64 offen offset:1024 lds'])
    G.append(['s_lshl_b32 s64, s72, 2', f's_add_u32 s64, s64, {W}', 's_lshl_b32 s64, s64, 10', 's_lshl_b32 s65, s73, 7', 's_add_u32 s64, s64, s65',
        f's_lshl_b32 s65, {W}, 11', f's_add_u32 s65, s65, {L_QT}', 's_mov_b32 m0, s65', f'buffer_load_dwordx4 v100, {S4(T2)}, s64 offen lds'])
    G.append(['s_add_u32 s64, s64, 0x100000', 's_add_u32 s65, s65, 1024', 's_mov_b32 m0, s65', f'buffer_load_dwordx4 v100, {S4(T2)}, s64 offen lds'])
    G.append(srd_l(T3, P_W2, 1376 * 1024) + ['s_lshl_b32 s64, s66, 15', f's_lshl_b32 s65, {W}, 13', 's_add_u32 s64, s64, s65', 's_lshl_b32 s65, s67, 7',
        's_add_u32 s64, s64, s65', f's_lshl_b32 s65, {W}, 10', f's_add_u32 s65, s65, {L_W2R}', 's_mov_b32 m0, s65',
        f'buffer_load_dwordx4 v101, {S4(T3)}, s64 offen lds'])
    G.append(['s_add_u32 s64, s64, 0x100000', 's_add_u32 s65, s65, 4096', 's_mov_b32 m0, s65', f'buffer_load_dwordx4 v101, {S4(T3)}, s64 offen lds ;@tag=dmaall'])
    G = [G[i] for i in (2, 3, 6, 7, 4, 5, 0, 1, 8, 9)]
    for ins in unpack(14, 11): e(ins)
    e('s_mov_b32 s64, 0xbfb8aa3b')
    for i in range(2): e(f'v_mul_f32 {v(16+i)}, s64, {v(14+i)}')
    for i in range(2): e(f'v_exp_f32 {v(16+i)}, {v(16+i)}')
    for i in range(2): e(f'v_add_f32 {v(16+i)}, 1.0, {v(16+i)}')
    for i in range(2): e(f'v_rcp_f32 {v(16+i)}, {v(16+i)}')
    for i in range(2): e(f'v_mul_f32 {v(14+i)}, {v(14+i)}, {v(16+i)}')
    e('v_cvt_pk_bf16_f32 v14, v14, v15')
    e(f's_lshl_b32 s64, {W}, 8'); e(f's_add_u32 s64, s64, {L_SC}')
    e('v_add_u32 v10, s64, v10')
    e('ds_write_b32 v10, v14')
    e(f'v_lshl_add_u32 v10, {v(V_G)}, 4, s64')
    e(f'v_lshl_add_u32 v17, {v(V_G)}, 3, {v(V_R)}')
    e('v_lshlrev_b32 v18, 7, v17'); e(f'v_lshl_add_u32 v18, {v(V_C)}, 3, v18')
    e(f's_lshl_b32 s64, {W}, 5'); e(f's_add_u32 s64, s64, {L_WM}'); e('v_add_u32 v18, s64, v18')
    e('s_mul_i32 s64, s63, 12288'); e('s_lshl_b32 s65, s62, 8'); e('s_add_u32 s64, s64, s65')
    e(f's_lshl_b32 s65, {W}, 6'); e('s_add_u32 s64, s64, s65'); e(f's_add_u32 s64, s64, {WS_MODP}')
    e('s_cmp_lt_u32 s2, 192'); e(f's_cselect_b32 s64, s64, {BIG}')
    e(f'v_lshlrev_b32 v19, 4, {v(V_G)}')
    e('s_mov_b32 s68, 0x00010001'); e('s_mov_b32 s69, 0x00010001')
    k.wait_tag('wm')
    e('s_barrier')
    k.stamp(3)
    for ks in range(4):
        e(f'ds_read_b128 {v(20+4*ks,4)}, v10 offset:{64*ks}')
        e(f'ds_read_b64_tr_b16 {v(36+4*ks,2)}, v18 offset:{4096*ks}')
        e(f'ds_read_b64_tr_b16 {v(38+4*ks,2)}, v18 offset:{4096*ks+512}')
    for ks in range(4):
        e(f'v_mfma_f32_16x16x32_bf16 v[52:55], {v(36+4*ks,4)}, {v(20+4*ks,4)}, {"0" if ks == 0 else "v[52:55]"}')
    e('v_mov_b32 v56, 0')
    e('s_mov_b64 exec, s[68:69]')
    e(f'buffer_store_dwordx4 v[52:55], v19, {WS}, s64 offen {SC}', tag='mod')
    e('s_mov_b64 exec, -1')
    e(f'buffer_load_dwordx2 v[58:59], v56, {S4(T4)}, 0 offen {SC}')
    KF = 60; VF = 70; WF = 74; P = 82; Q = 86; OUT = 92
    kvc = []
    c = kvc.append
    for u in range(4):
        for j in range(4):
            for h in range(2):
                src = WR + 4 * u + 2 * h + (j >> 1)
                c(f'v_and_b32 {v(WF+2*j+h)}, {MASK}, {v(src)}' if j & 1 else f'v_lshlrev_b32 {v(WF+2*j+h)}, 16, {v(src)}')
        for i in range(5): kvc += unpack(KF + 2 * i, KR + 4 * i + u)
        for o in range(2): c(f'v_pk_mul_f32 {v(P+2*o,2)}, {v(KF+2*o,2)}, {v(WF+6,2)}')
        if EX_KV:
            for t in range(1, 4):
                for o in range(2): c(f'v_pk_mul_f32 {v(Q+2*o,2)}, {v(KF+2*(o+t),2)}, {v(WF+2*(3-t),2)}')
                kvc += R2(P) + R2(P + 2) + R2(Q) + R2(Q + 2)
                for o in range(2): c(f'v_pk_add_f32 {v(P+2*o,2)}, {v(P+2*o,2)}, {v(Q+2*o,2)}')
        else:
            for t in range(1, 4):
                for o in range(2): c(f'v_pk_fma_f32 {v(P+2*o,2)}, {v(KF+2*(o+t),2)}, {v(WF+2*(3-t),2)}, {v(P+2*o,2)}')
        for o in range(2): kvc += unpack(VF + 2 * o, VR + 4 * o + u)
        kvc += R2(P) + R2(P + 2)
        for o in range(2): c(f'v_pk_mul_f32 {v(P+2*o,2)}, {v(P+2*o,2)}, {v(VF+2*o,2)}')
        for o in range(2): c(f'v_cvt_pk_bf16_f32 {v(OUT+4*o+u)}, {v(P+2*o)}, {v(P+2*o+1)}')
    for g in G[:G_EARLY]: e('\n'.join(g))
    rest = G[G_EARLY:]; step = len(kvc) // (len(rest) + 1) if rest else 0
    for i, ins in enumerate(kvc):
        e(ins)
        if rest and (i + 1) % step == 0: e('\n'.join(rest.pop(0)))
        if i == len(kvc) * 5 // 8:
            e('s_mov_b32 s7, 0')
            e('NONCE_P: ;@keep')
            e('v_readfirstlane_b32 s60, v58'); e('v_readfirstlane_b32 s61, v59')
            e('s_add_u32 s7, s7, 1')
            e('s_cmp_gt_u32 s7, 20000')
            e('s_cbranch_scc1 NONCE_OK ;@nowait')
            e('s_cmp_lg_u32 s60, 0')
            e('s_cbranch_scc1 NONCE_OK ;@nowait')
            e(f'buffer_load_dwordx2 v[58:59], v56, {S4(T4)}, 0 offen {SC} ;@nocount')
            e('s_waitcnt vmcnt(0) ;@raw')
            e('s_branch NONCE_P ;@nowait')
            e('NONCE_OK: ;@keep')
            k.wait_tag('mod')
            e(set_flag_wave(FL_0W, 104))
    e('v_mul_u32_u24 v13, 288, v12'); e('v_lshl_add_u32 v13, v7, 4, v13')
    e(f'ds_write_b128 v13, {v(OUT,4)} offset:{L_KVT}')
    e(f'ds_write_b128 v13, {v(OUT+4,4)} offset:{L_KVT+144}')
    k.stamp(4)
    e(f'v_lshl_add_u32 v13, {v(V_R)}, 2, {v(V_G)}'); e('v_mul_u32_u24 v13, 144, v13')
    e(f'v_lshl_add_u32 v13, {v(V_C)}, 3, v13')
    e(f's_lshl_b32 s64, {W}, 5'); e('v_add_u32 v13, s64, v13')
    e(f'v_lshl_add_u32 v14, {v(V_G)}, 4, {v(V_R)}'); e('v_lshlrev_b32 v14, 7, v14')
    e(f'v_lshl_add_u32 v14, {v(V_C)}, 3, v14'); e('v_add_u32 v14, s64, v14')
    e('v_and_b32 v15, 15, v0'); e('v_lshlrev_b32 v15, 12, v15')
    e(f'v_lshl_add_u32 v16, {v(V_G)}, 4, v15')
    e(f'v_lshl_add_u32 v15, {v(V_G)}, 5, v15')
    e('s_lshl_b32 s62, s67, 18'); e(f's_lshl_b32 s65, {W}, 16'); e('s_add_u32 s62, s62, s65')
    e('s_lshl_b32 s65, s66, 7'); e('s_add_u32 s62, s62, s65')
    e('s_lshl_b32 s63, s73, 18'); e(f's_lshl_b32 s65, {W}, 16'); e('s_add_u32 s63, s63, s65')
    e('s_lshl_b32 s65, s72, 7'); e('s_add_u32 s63, s63, s65'); e(f's_add_u32 s63, s63, {WS_QT}')
    e('s_waitcnt lgkmcnt(0)')
    e('s_barrier')
    for blk in range(2):
        for half in range(2):
            e(f'ds_read_b64_tr_b16 {v(20+4*blk+2*half,2)}, v13 offset:{L_KVT+(32*blk+16*half)*144}')
    for blk in range(2): e(f'buffer_store_dwordx4 {v(20+4*blk,4)}, v16, {WS}, s62 offen offset:{64*blk} {SC}', tag='kv')
    k.stamp(5)
    e(f'v_lshlrev_b32 v13, 7, {v(V_G)}'); e('v_and_b32 v56, 15, v0'); e('v_add_u32 v13, v13, v56')
    e('s_lshl_b32 s64, s67, 4'); e('s_add_u32 s64, s64, 384'); e('v_add_u32 v13, s64, v13'); e('v_lshlrev_b32 v13, 6, v13')
    poll_issue(k, FL_0W, 13, 58, 1, 32)
    F0 = 60
    for i in range(2):
        for u in range(4):
            for ins in unpack(F0 + 8 * i + 2 * u, SR + 4 * i + u): e(ins)
    for i in range(2):
        F = F0 + 8 * i; T = 76 + 4 * i
        e(f'v_pk_add_f32 {v(T,2)}, {v(F,2)}, {v(F+2,2)}'); e(f'v_pk_add_f32 {v(T+2,2)}, {v(F+4,2)}, {v(F+6,2)}')
        e(f'v_pk_add_f32 {v(T,2)}, {v(T,2)}, {v(T+2,2)}'); e(f'v_add_f32 {v(T)}, {v(T)}, {v(T+1)}')
    for ins in ilv(wave_reduce_sum(76, 64), wave_reduce_sum(80, 65)): e(ins)
    e('s_mov_b32 s3, 0x3b000000')
    for i in range(2):
        e(f'v_mov_b32 {v(84+i)}, s{64+i}'); e(f'v_mul_f32 {v(84+i)}, s3, {v(84+i)}')
    for i in range(2):
        F = F0 + 8 * i; T = 76 + 4 * i
        for u in range(4): e(f'v_pk_add_f32 {v(F+2*u,2)}, {v(F+2*u,2)}, {v(84,2)} op_sel:[0,{i}] op_sel_hi:[1,{i}] neg_lo:[0,1] neg_hi:[0,1]')
        e(f'v_pk_mul_f32 {v(T,2)}, {v(F,2)}, {v(F,2)}')
        for u in range(1, 4): e(f'v_pk_fma_f32 {v(T,2)}, {v(F+2*u,2)}, {v(F+2*u,2)}, {v(T,2)}')
        e(f'v_add_f32 {v(T)}, {v(T)}, {v(T+1)}')
    for ins in ilv(wave_reduce_sum(76, 64), wave_reduce_sum(80, 65)): e(ins)
    e('s_mov_b32 s3, 0x3b000000')
    for i in range(2):
        e(f'v_mov_b32 {v(86+i)}, s{64+i}'); e(f'v_mul_f32 {v(86+i)}, s3, {v(86+i)}')
    for i in range(2): rnd(k, 86 + i)
    for i in range(2): e(f'v_add_f32 {v(86+i)}, 0x3727c5ac, {v(86+i)}')
    for i in range(2): rnd(k, 86 + i)
    for i in range(2): e(f'v_sqrt_f32 {v(86+i)}, {v(86+i)}')
    for i in range(2): rnd(k, 86 + i)
    for i in range(2): e(f'v_rcp_f32 {v(86+i)}, {v(86+i)}')
    for i in range(2): rnd(k, 84 + i)
    poll_wait(k, FL_0W, 13, 58, 1, 32)
    k.stamp(8)
    e('s_lshl_b32 s64, s67, 8'); e(f's_add_u32 s64, s64, {WS_MODP + 3*2048}')
    e(f'v_lshlrev_b32 v13, 2, {v(V_L)}')
    for part in range(4):
        e(f'buffer_load_dword {v(96+part)}, v13, {WS}, s64 offen {SCL}')
        e(f'buffer_load_dword {v(100+part)}, v13, {WS}, s64 offen offset:2048 {SCL}')
        if part < 3: e('s_add_u32 s64, s64, 12288')
    e('s_lshl_b32 s64, s74, 5'); e(f's_lshl_b32 s65, {W}, 3'); e('s_add_u32 s64, s64, s65'); e(f's_add_u32 s64, s64, {WS_ST1}')
    e('s_add_u32 s65, s64, 8192')
    e('v_mov_b32 v56, 0')
    e('s_mov_b64 exec, 1')
    e(f'buffer_store_dwordx2 v[84:85], v56, {WS}, s64 offen {SC}')
    e(f'buffer_store_dwordx2 v[86:87], v56, {WS}, s65 offen {SC}', tag='kv')
    e('s_mov_b64 exec, -1')
    k.wait_tag('kv')
    e('s_barrier')
    set_flag(k, 1, 88)
    k.stamp(6)
    for Th in range(2):
        for half in range(2):
            e(f'ds_read_b64_tr_b16 {v(28+4*Th+2*half,2)}, v14 offset:{L_QT+(8*Th+4*half)*128}')
    e(f'v_lshl_add_u32 v14, {v(V_G)}, 2, {v(V_R)}'); e('v_lshlrev_b32 v14, 7, v14'); e(f'v_lshl_add_u32 v14, {v(V_C)}, 5, v14')
    e(f's_lshr_b32 s68, {W}, 1'); e(f's_and_b32 s69, {W}, 1')
    e('s_lshl_b32 s64, s68, 12'); e('s_lshl_b32 s65, s69, 4'); e('s_add_u32 s64, s64, s65'); e(f's_add_u32 s64, s64, {L_W2R}'); e('v_add_u32 v14, s64, v14')
    for i in range(2):
        e(f'ds_read_b64_tr_b16 {v(36+4*i,2)}, v14 offset:{8*i}')
        e(f'ds_read_b64_tr_b16 {v(38+4*i,2)}, v14 offset:{8*i+2048}')
    for Th in range(2): e(f'buffer_store_dwordx4 {v(28+4*Th,4)}, v15, {WS}, s63 offen offset:{16*Th} {SC}', tag='q')
    e('s_lshl_b32 s64, s68, 5'); e('s_add_u32 s64, s64, s66')
    e('s_mul_i32 s65, s67, 43'); e('s_add_u32 s65, s65, s64'); e('s_lshl_b32 s65, s65, 12')
    e('s_lshl_b32 s3, s69, 11'); e('s_add_u32 s65, s65, s3'); e(f's_add_u32 s65, s65, {WS_W2P}')
    e('s_cmp_lt_u32 s64, 43'); e(f's_cselect_b32 s65, s65, {BIG}')
    for i in range(2): e(f'buffer_store_dwordx4 {v(36+4*i,4)}, {v(V_L16)}, {WS}, s65 offen offset:{1024*i} {SC}')
    e('v_lshlrev_b32 v15, 6, v17'); e(f'v_lshl_add_u32 v15, {v(V_C)}, 3, v15')
    e('s_lshl_b32 s64, s68, 12'); e('s_lshl_b32 s65, s69, 5'); e('s_add_u32 s64, s64, s65'); e(f's_add_u32 s64, s64, {L_W1R}'); e('v_add_u32 v15, s64, v15')
    for i in range(2):
        e(f'ds_read_b64_tr_b16 {v(104+4*i,2)}, v15 offset:{2048*i}')
        e(f'ds_read_b64_tr_b16 {v(106+4*i,2)}, v15 offset:{2048*i+256}')
    for i in range(2):
        for u in range(4):
            for ins in unpack(112 + 8 * i + 2 * u, 104 + 4 * i + u): e(ins)
    e('s_lshl_b32 s64, s68, 5'); e('s_add_u32 s64, s64, s66')
    e('s_lshl_b32 s63, s64, 1'); e('s_add_u32 s63, s63, s69')
    e('s_lshl_b32 s62, s63, 14'); e('s_lshl_b32 s6, s67, 11'); e('s_add_u32 s62, s62, s6'); e(f's_add_u32 s62, s62, {WS_W1P}')
    e('s_lshl_b32 s63, s63, 6'); e(f's_mul_i32 s6, s67, {1408*4}'); e('s_add_u32 s63, s63, s6'); e(f's_add_u32 s63, s63, {WS_TP}')
    e('s_cmp_lt_u32 s64, 43'); e(f's_cselect_b32 s62, s62, {BIG}'); e(f's_cselect_b32 s63, s63, {BIG}')
    e(f's_lshl_b32 s64, {W}, 9'); e(f's_add_u32 s64, s64, {L_CS}')
    e('v_add_u32 v13, s64, v13')
    e(f'v_lshl_add_u32 v14, {v(V_L)}, 1, s64')
    e(f'v_lshl_add_u32 v15, {v(V_G)}, 5, s64')
    e(f'v_lshl_add_u32 v16, {v(V_G)}, 4, s64')
    e('s_mov_b32 s68, 0x00010001'); e('s_mov_b32 s69, 0x00010001')
    e('v_add_f32 v20, v96, v97'); e('v_add_f32 v22, v98, v99'); e('v_add_f32 v24, v100, v101'); e('v_add_f32 v26, v102, v103')
    e('v_add_f32 v20, v20, v22'); e('v_add_f32 v24, v24, v26')
    rnd(k, 24); e('v_cvt_pk_bf16_f32 v20, v20, v20'); e('v_add_f32 v24, 1.0, v24'); rnd(k, 24)
    e('ds_write_b32 v13, v24')
    e('ds_write_b16 v14, v20 offset:256')
    for i in range(2):
        e(f'ds_read_b128 {v(60+8*i,4)}, v15 offset:{128*i}')
        e(f'ds_read_b128 {v(64+8*i,4)}, v15 offset:{128*i+16}')
        e(f'ds_read_b128 {v(36+4*i,4)}, v16 offset:{256+64*i}')
    for i in range(2):
        U = 112 + 8 * i
        for u in range(4): e(f'v_pk_mul_f32 {v(U+2*u,2)}, {v(U+2*u,2)}, {v(60+8*i+2*u,2)}')
        for u in range(4): e(f'v_cvt_pk_bf16_f32 {v(44+4*i+u)}, {v(U+2*u)}, {v(U+2*u+1)}')
        e(f'buffer_store_dwordx4 {v(44+4*i,4)}, {v(V_L16)}, {WS}, s62 offen offset:{1024*i} {SC}')
    for i in range(2):
        e(f'v_mfma_f32_16x16x32_bf16 v[52:55], {v(104+4*i,4)}, {v(36+4*i,4)}, {"0" if i == 0 else "v[52:55]"}')
    e('s_mov_b64 exec, s[68:69]')
    e(f'buffer_store_dwordx4 v[52:55], v19, {WS}, s63 offen {SC}', tag='p1')
    e('s_mov_b64 exec, -1')
    k.stamp(9)
    e('s_lshr_b32 s64, s2, 5'); e('s_lshl_b32 s64, s64, 6')
    e(f'v_lshl_add_u32 v13, {v(V_L)}, 9, s64')
    poll_issue(k, 1, 13, 58, 1, 32)
    conv_prep(k)
    k.wait_tag('q')
    e(set_flag_wave(FL_Q, 88))
    k.stamp(10)

ACC = 64; QR = 16; M = 24; R = ACC + 48
OV = 40; OIN = 48; KVR = 52; TT = 56; QF = 60; C0 = 12; C1 = 14
VA = 1; VB = 7; VW = 8; VRD = 9; VKV = 10; VWR = 11; VP32 = 62; VP = 63

def conv_prep(k):
    e = k.e
    e(f's_lshr_b32 s70, {W}, 1'); e(f's_and_b32 s71, {W}, 1')
    for i in range(4): e(f'v_mov_b32 {v(88+i)}, 0')
    e('s_mul_i32 s64, s70, 4160'); e('s_mul_i32 s65, s70, 4288'); e(f's_add_u32 s65, s65, {L_X}')
    e('s_mul_i32 s3, s70, 8704'); e(f's_add_u32 s3, s3, {L_O+128*16}')
    e(f'v_add_u32 v92, s64, {v(V_L16)}'); e(f'v_add_u32 v93, s65, {v(V_L16)}'); e(f'v_add_u32 v94, s3, {v(V_L16)}')
    e('s_mov_b64 exec, 0xf'); e('ds_write_b128 v92, v[88:91]')
    e('s_mov_b64 exec, 0xfff'); e('ds_write_b128 v93, v[88:91]')
    e('s_mov_b64 exec, 0x3f')
    for tq in range(4): e(f'ds_write_b128 v94, v[88:91] offset:{tq*TQS}')
    e('s_mov_b64 exec, -1')
    e('s_lshl_b32 s3, s71, 5'); e('s_add_u32 s64, s64, s3'); e('s_add_u32 s64, s64, 224')
    e(f'v_sub_u32 v92, {v(V_C)}, {v(V_R)}'); e('v_lshlrev_b32 v92, 3, v92'); e(f'v_lshlrev_b32 v93, 6, {v(V_G)}')
    e('v_sub_u32 v92, v92, v93'); e('v_add_u32 v92, s64, v92')
    for i in range(16):
        e(f'ds_read_b64_tr_b16 {a(4*i,2)}, v92 offset:{256*i+32}')
        e(f'ds_read_b64_tr_b16 {a(4*i+2,2)}, v92 offset:{256*i}')

def w1reg(sl, ks):
    i = sl * 16 + ks
    return a(128 + 4 * i, 4) if i < 32 else v(128 + 4 * (i - 32), 4)
def w2reg(i, dt): return a(16 * i + 4 * dt, 4) if i < 8 else v(192 + 16 * (i - 8) + 4 * dt, 4)
def hreg(i, rt):
    j = 4 * i + rt
    return a(128 + 4 * j, 4) if j < 32 else v(128 + 4 * (j - 32), 4)

def gemm_ids(k):
    e = k.e
    if MAPB:
        e('s_and_b32 s9, s2, 1'); e('s_lshl_b32 s9, s9, 2'); e('s_bfe_u32 s3, s2, 0x20003'); e('s_add_u32 s9, s9, s3')
        e('s_bfe_u32 s8, s2, 0x20001'); e('s_lshl_b32 s8, s8, 3'); e('s_lshr_b32 s3, s2, 5'); e('s_add_u32 s8, s8, s3')
    else:
        e('s_and_b32 s8, s2, 31'); e('s_lshr_b32 s9, s2, 5')
    e('s_lshl_b32 s13, s9, 2'); e(f's_add_u32 s13, s13, {W}')
    e(f's_lshr_b32 s14, {W}, 1'); e('s_lshl_b32 s14, s14, 3'); e('s_add_u32 s14, s14, s9'); e('s_add_u32 s14, s14, 32')
    e(f's_and_b32 s3, {W}, 1'); e('s_lshl_b32 s15, s14, 1'); e('s_add_u32 s15, s15, s3')
    e('s_lshl_b32 s10, s13, 15'); e(f's_add_u32 s10, s10, {WS_W1P}'); e('s_add_u32 s11, s10, 16384')
    e('s_lshl_b32 s12, s15, 14'); e(f's_add_u32 s12, s12, {WS_W1P}')
    e('s_cmp_lt_u32 s14, 43'); e(f's_cselect_b32 s12, s12, {BIG}')
    e(f'v_add_u32 v240, 0x1000, {v(V_L16)}'); e(f'v_add_u32 v241, 0x2000, {v(V_L16)}'); e(f'v_add_u32 v242, 0x3000, {v(V_L16)}')
def w1load(ks, sl):
    vo = v(V_L16) if ks < 4 else v(239 + (ks >> 2))
    return f'buffer_load_dwordx4 {w1reg(sl,ks)}, {vo}, {WS}, s{10+sl} offen offset:{1024*(ks&3)} {SCL}'

def phase2(k):
    e = k.e
    e(f's_lshr_b32 s70, {W}, 1'); e(f's_and_b32 s71, {W}, 1')
    e('s_mov_b32 s16, s70'); e('s_mov_b32 s17, s71')
    e('s_lshl_b32 s18, s2, 1'); e('s_add_u32 s18, s18, s16')
    e('s_lshl_b32 s19, s18, 12')
    e('s_lshl_b32 s64, s17, 11'); e('s_add_u32 s65, s19, s64')
    e('s_mul_i32 s20, s16, 4288'); e(f's_add_u32 s20, s20, {L_X}')
    e('s_add_u32 s64, s64, s20'); e('s_add_u32 s64, s64, 192')
    e('s_mov_b32 m0, s64')
    poll_wait(k, 1, 13, 58, 1, 32)
    k.stamp(11)
    for i in range(2): e(f'buffer_load_dwordx4 {v(V_L16)}, {WS}, s65 offen offset:{1024*i} {SCL} lds', tag='kvp')
    e(f's_lshl_b32 s3, {W}, 12'); e(f'v_lshl_add_u32 v13, {v(V_L)}, 6, s3')
    poll_issue(k, 1, 13, 24)
    e('s_lshr_b32 s3, s2, 5'); e('s_lshl_b32 s3, s3, 7'); e('s_lshr_b32 s6, s2, 3'); e('s_and_b32 s6, s6, 3'); e('s_add_u32 s3, s3, s6'); e('s_lshl_b32 s3, s3, 6')
    e(f'v_lshl_add_u32 v12, {v(V_L)}, 8, s3')
    poll_issue(k, FL_Q, 12, 26, 1, 32)
    e('s_lshl_b32 s3, s17, 4')
    e(f'v_lshlrev_b32 {v(VP)}, 5, {v(V_C)}'); e(f'v_lshl_add_u32 {v(VP)}, {v(V_G)}, 2, {v(VP)}'); e(f'v_add3_u32 {v(VP)}, {v(VP)}, {v(V_R)}, s3')
    e(f'v_lshlrev_b32 {v(VP32)}, 5, {v(VP)}')
    e('s_lshl_b32 s3, s17, 6'); e(f'v_add_u32 v58, s3, {v(V_L)}')
    e(f'v_add_u32 v56, {v(V_C)}, {v(V_G)}'); e('v_lshlrev_b32 v56, 6, v56'); e(f'v_lshl_add_u32 v56, {v(V_R)}, 4, v56')
    e(f'v_add_u32 {v(VB)}, s20, v56')
    e(f'v_lshlrev_b32 v56, 5, {v(V_C)}'); e(f'v_lshl_add_u32 v56, {v(V_R)}, 3, v56')
    e('s_lshl_b32 s3, s17, 2'); e(f'v_add3_u32 v56, v56, {v(V_G)}, s3')
    e('s_add_u32 s3, s20, 192'); e(f'v_lshl_add_u32 {v(VKV)}, v56, 1, s3')
    e('s_mul_i32 s21, s16, 8704'); e(f's_add_u32 s21, s21, {L_O}')
    e('v_add_u32 v56, 16, v58'); e('v_subrev_u32 v57, 127, v56')
    e('v_cmp_lt_u32 vcc, 127, v56'); e('v_cndmask_b32 v56, v56, v57, vcc')
    e(f'v_cmp_lt_u32 vcc, 123, {v(VP)}'); e('s_mov_b64 s[22:23], vcc')
    e('v_mov_b32 v57, 133'); e('v_cndmask_b32 v56, v56, v57, vcc')
    e(f'v_lshl_add_u32 {v(VW)}, v56, 4, s21')
    e(f'v_add_u32 v56, 128, {v(V_R)}'); e(f'v_lshl_add_u32 {v(VWR)}, v56, 4, s21')
    e(f'v_cmp_gt_u32 vcc, 4, {v(VP)}'); e('v_cndmask_b32 v58, v58, v56, vcc')
    e(f'v_cmp_eq_u32 vcc, 3, {v(V_R)}'); e('v_mov_b32 v57, 132'); e('v_cndmask_b32 v58, v58, v57, vcc')
    e(f'v_lshl_add_u32 {v(VRD)}, v58, 4, s21')
    for i in range(4): e(f'v_mov_b32 {v(KVR+i)}, 0')
    gemm_ids(k)
    e(f'v_lshlrev_b32 v56, 6, {v(VP)}')
    e(f'v_mul_u32_u24 v57, 12288, {v(V_C)}'); e(f'v_lshl_add_u32 v57, {v(V_R)}, 11, v57')
    e(f's_add_u32 s62, s19, {WS_QT}'); e(f's_mov_b32 s63, {WS_ST1}'); e(f's_mov_b32 s67, {WS_ST1+8192}')
    e('s_lshl_b32 s68, s18, 2'); e(f's_add_u32 s68, s68, {WS_MODP}')
    k.stamp(12)
    k.wait_tag('kvp')
    e('s_waitcnt lgkmcnt(0)')
    e('s_barrier')
    set_flag(k, 2, 40)
    k.stamp(13)
    epl = [f'buffer_load_dword v58, v57, {WS}, s68 offen {SCL}',
           f'buffer_load_dwordx4 {v(QR,4)}, {v(VP32)}, {WS}, s62 offen {SCL}']
    for j in range(2): epl += [f'buffer_load_dwordx4 {v(M+4*j,4)}, v56, {WS}, s63 offen offset:{16*j} {SCL}', f'buffer_load_dwordx4 {v(R+4*j,4)}, v56, {WS}, s67 offen offset:{16*j} {SCL}']
    epl += [f'buffer_load_dwordx4 {v(QR+4,4)}, {v(VP32)}, {WS}, s62 offen offset:16 {SCL}']
    for j in range(2, 4): epl += [f'buffer_load_dwordx4 {v(M+4*j,4)}, v56, {WS}, s63 offen offset:{16*j} {SCL}', f'buffer_load_dwordx4 {v(R+4*j,4)}, v56, {WS}, s67 offen offset:{16*j} {SCL}']
    LO = 'op_sel:[0,0] op_sel_hi:[1,0]'; HI = 'op_sel:[0,1] op_sel_hi:[1,1]'
    LO3 = 'op_sel:[0,0,0] op_sel_hi:[1,0,1]';
    def ldB(i): return [f'ds_read_b128 {a(64+4*i,4)}, {v(VB)} offset:{256*i}']
    def consts():
        o = ['v_add_f32_dpp v58, v58, v58 quad_perm:[1,0,3,2] row_mask:0xf bank_mask:0xf',
             'v_add_f32_dpp v58, v58, v58 quad_perm:[2,3,0,1] row_mask:0xf bank_mask:0xf',
             'v_cvt_pk_bf16_f32 v58, 0, v58',
             'v_readlane_b32 s64, v58, 0', 'v_readlane_b32 s65, v58, 4', 'v_readlane_b32 s66, v58, 8',
             f'v_mov_b32 {v(C1)}, s64', f'v_add_f32 {v(C0+1)}, 1.0, s65'.replace('v_add_f32', 'v_add_f32_e64'), f'v_mov_b32 {v(C1+1)}, s66',
             f'v_cvt_pk_bf16_f32 {v(C0+1)}, 0, {v(C0+1)}',
             's_lshl_b32 s64, s81, 16', f's_and_b32 s65, s81, {MASK}', 's_cmp_eq_u32 s16, 0', 's_cselect_b32 s64, s64, s65',
             f'v_mov_b32 {v(C0)}, s64']
        return o
    def qchain(T):
        m = M + T; o = unpack(QF, QR + T // 2)
        o += [f'v_pk_add_f32 {v(m,2)}, {v(QF,2)}, {v(m,2)} neg_lo:[0,1] neg_hi:[0,1]'] + (R2(m) if EX_X1 else [])
        o += [f'v_pk_mul_f32 {v(m,2)}, {v(m,2)}, {v(R+T,2)}'] + (R2(m) if EX_X1 else [])
        if EX_X1:
            o += [f'v_pk_mul_f32 {v(m,2)}, {v(m,2)}, {v(C0,2)} {HI}'] + R2(m)
            o += [f'v_pk_add_f32 {v(m,2)}, {v(m,2)}, {v(C1,2)} {LO}'] + R2(m)
        else:
            o += [f'v_pk_fma_f32 {v(m,2)}, {v(m,2)}, {v(C0,2)}, {v(C1,2)} op_sel:[0,1,0] op_sel_hi:[1,1,0]']
            o += [f'v_pk_mul_f32 {v(m,2)}, {v(m,2)}, {v(C1,2)} {HI}']
        return o
    def dpp(T):
        z = ACC + 4 * T; ov = OV + 4 * ((T >> 2) & 1) + (T & 3)
        return [f'v_mov_b32_dpp {v(ov)}, {v(z+3)} row_ror:12 row_mask:0xf bank_mask:0x7',
                f'v_add_f32_dpp {v(z)}, {v(z+1)}, {v(z)} row_ror:4 row_mask:0xf bank_mask:0xe',
                f'v_add_f32_dpp {v(ov)}, {v(z+2)}, {v(ov)} row_ror:8 row_mask:0xf bank_mask:0x3',
                f'v_add_f32_dpp {v(z)}, {v(z+2)}, {v(z)} row_ror:8 row_mask:0xf bank_mask:0xc',
                f'v_add_f32_dpp {v(ov)}, {v(z+1)}, {v(ov)} row_ror:4 row_mask:0xf bank_mask:0x1',
                f'v_add_f32_dpp {v(z)}, {v(z+3)}, {v(z)} row_ror:12 row_mask:0xf bank_mask:0x8']
    def exchW(tq):
        ov = OV + 4 * (tq & 1); g = ['s_mov_b64 exec, s[22:23]']
        for j in range(4):
            T2 = 4 * tq + j + 1
            if T2 < 16: g.append(f'ds_write_b32 {v(VWR)}, {v(ov+j)} offset:{(T2>>2)*TQS+4*(T2&3)}')
        g += ['s_mov_b64 exec, -1']
        return [f'ds_write_b128 {v(VW)}, {v(ov,4)} offset:{tq*TQS}', '\n'.join(g), 's_waitcnt lgkmcnt(0)\ns_barrier']
    def exchR(tq):
        o = [f'ds_read_u16_d16_hi {v(KVR+j)}, {v(VKV)} offset:{256*(4*tq+j)}' for j in range(4)]
        return o + [f'ds_read_b128 {v(OIN,4)}, {v(VRD)} offset:{tq*TQS}']
    def final(T):
        j = T & 3; y = OIN + j; t = TT + j; o = []
        if EX_X1:
            o += [f'v_pk_mul_f32 {v(t,2)}, {v(KVR+j,2)}, {v(C0,2)} {LO}'] + R2(t)
            o += [f'v_add_f32 {v(y)}, {v(ACC+4*T)}, {v(y)}', f'v_add_f32 {v(y+1)}, {v(ACC+4*T+4)}, {v(y+1)}'] + R2(y)
            o += [f'v_pk_add_f32 {v(y,2)}, {v(y,2)}, {v(t,2)}'] + R2(y)
            o += [f'v_pk_mul_f32 {v(y,2)}, {v(M+T,2)}, {v(y,2)}'] + R2(y)
            o += [f'v_pk_mul_f32 {v(y,2)}, {v(y,2)}, {v(C1,2)} {HI}'] + R2(y)
            o += unpack(QF, QR + T // 2)
            o += [f'v_pk_add_f32 {v(y,2)}, {v(QF,2)}, {v(y,2)}', f'v_cvt_pk_bf16_f32 {v(QR+T//2)}, {v(y)}, {v(y+1)}']
        else:
            o += [f'v_pk_fma_f32 {v(y,2)}, {v(KVR+j,2)}, {v(C0,2)}, {v(y,2)} {LO3}']
            o += unpack(QF, QR + T // 2)
            o += [f'v_add_f32 {v(y)}, {v(ACC+4*T)}, {v(y)}', f'v_add_f32 {v(y+1)}, {v(ACC+4*T+4)}, {v(y+1)}']
            o += [f'v_pk_fma_f32 {v(y,2)}, {v(M+T,2)}, {v(y,2)}, {v(QF,2)}', f'v_cvt_pk_bf16_f32 {v(QR+T//2)}, {v(y)}, {v(y+1)}']
        return o
    PF = 5
    for i in range(PF): e('\n'.join(ldB(i)))
    e(f's_add_u32 s26, s19, {WS_X1T}')
    wl = [w1load(ks, sl) for ks in range(16) for sl in range(3)]
    qc = []
    for T in range(0, 16, 2): qc += qchain(T)
    nq = len(qc) // 8
    plan = {T: [] for T in range(17)}
    for T in range(16):
        if T + PF < 16: plan[T] += ldB(T + PF)
        if T >= 1: plan[T] += dpp(T - 1)
    plan[4] += ['@pollF1'] + exchW(0) + epl[:4]; plan[5] += epl[4:]
    plan[F2_STAGE - 2] += ['@issueF2']
    plan[8] += exchW(1); plan[12] += exchW(2)
    plan[F2_STAGE] = plan[F2_STAGE][:-3] + ['@pollF2'] + plan[F2_STAGE][-3:]
    plan[9] += consts() + qc[:2 * nq]
    plan[10] += qc[2 * nq:5 * nq]
    plan[11] += qc[5 * nq:] + exchR(0)
    plan[12] = final(0) + final(2) + plan[12] + exchR(1)
    plan[13] += final(4) + final(6) + [f'buffer_store_dwordx4 {v(QR,4)}, {v(VP32)}, {WS}, s26 offen {SC}'] + exchR(2)
    plan[14] += final(8) + final(10)
    wi = 0; cnt = 0
    for T in range(16):
        f = plan[T]; n = T + 1; per = -(-len(f) // n)
        if T == 8: k.stamp(14)
        if T == 4: k.stamp(34)
        if T == 5: k.stamp(35)
        if T == 10: k.stamp(36)
        if T == 12: k.stamp(37)
        if T == 14: k.stamp(38)
        for i in range(n):
            cin = '0' if i == 0 else v(ACC + 4 * T, 4)
            e(f'v_mfma_f32_16x16x32_bf16 {v(ACC+4*T,4)}, {a(4*i,4)}, {a(64+4*(T-i),4)}, {cin}')
            for ins in f[i * per:(i + 1) * per]:
                if ins == '@pollF1': poll_wait(k, 1, 13, 24); poll_wait(k, FL_Q, 12, 26, 1, 32); e(f'v_mov_b32 v243, v13')
                elif ins == '@issueF2': poll_issue(k, 2, 243, 252)
                elif ins == '@pollF2': poll_wait(k, 2, 243, 252)
                else: e(ins)
            cnt += 1
            if T > F2_STAGE and cnt % W1_PACE == 0: e(wl[wi]); wi += 1
    k.stamp(15)
    for ins in dpp(15) + exchW(3) + exchR(3) + final(12) + final(14): e(ins)
    e(f'buffer_store_dwordx4 {v(QR+4,4)}, {v(VP32)}, {WS}, s26 offen offset:16 {SC}', tag='x1')
    k.stamp(16)
    k.w1rest = wl[wi:]

G_ACC = 64; AF = 32; UU = 8; TTv = 20; ST = 112; GR = 120; SM = 124; VT = 244; ONES = 248; GBR = 0

def phase3(k):
    e = k.e
    e(f'v_lshlrev_b32 v1, 4, {v(V_G)}')
    e('s_lshl_b32 s16, s13, 7'); e(f's_add_u32 s16, s16, {WS_TP}')
    e('s_lshl_b32 s17, s15, 6'); e(f's_add_u32 s17, s17, {WS_TP}')
    srd(k, T1, P_B1, 2752)
    e(f'v_lshlrev_b32 v7, 3, {v(V_G)}')
    e('s_lshl_b32 s18, s13, 6'); e('s_lshl_b32 s19, s15, 5')
    B1R = 112
    def tpreg(dg, sl):
        i = dg * 3 + sl
        return 32 + 4 * i if i < 20 else 192 + 4 * (i - 20)
    for ins in k.w1rest[:W1_BEFORE_F3]: e(ins)
    k.wait_tag('x1')
    e('s_barrier')
    set_flag(k, 3, 120)
    k.stamp(17)
    for ins in k.w1rest[W1_BEFORE_F3:]: e(ins)
    k.stamp(30)
    e(f'buffer_load_dwordx2 {v(B1R,2)}, v7, {S4(T1)}, s18 offen')
    e(f'buffer_load_dwordx2 {v(B1R+2,2)}, v7, {S4(T1)}, s18 offen offset:32')
    e(f'buffer_load_dwordx2 {v(B1R+4,2)}, v7, {S4(T1)}, s19 offen')
    for dg in range(8):
        e(f'buffer_load_dwordx4 {v(tpreg(dg,0),4)}, v1, {WS}, s16 offen {SCL}')
        e(f'buffer_load_dwordx4 {v(tpreg(dg,1),4)}, v1, {WS}, s16 offen offset:64 {SCL}')
        e(f'buffer_load_dwordx4 {v(tpreg(dg,2),4)}, v1, {WS}, s17 offen {SCL}')
        if dg < 7: e('s_add_u32 s16, s16, 5632'); e('s_add_u32 s17, s17, 5632')
    def w2loads(i):
        o = []
        if i == 10: o += [f's_cmp_eq_u32 {W}, 3', f's_cselect_b32 s27, {BIG}, s27']
        o += [f'buffer_load_dwordx4 {w2reg(i,j)}, {v(V_L16)}, {WS}, s27 offen offset:{1024*j} {SCL}' for j in range(4)]
        if i < 10: o += ['s_add_u32 s27, s27, 16384']
        return o
    e('s_mul_i32 s27, s9, 43'); e(f's_add_u32 s27, s27, {W}'); e('s_lshl_b32 s27, s27, 12'); e(f's_add_u32 s27, s27, {WS_W2P}')
    w2q = []
    for i in range(11): w2q += w2loads(i)
    n = 0
    while n < W2_EARLY:
        ins = w2q.pop(0); e(ins); n += ins.startswith('buffer')
    poll_issue(k, 3, 243, 252)
    k.stamp(31)
    for i in range(4): e(f'v_mov_b32 {v(ONES+i)}, 0x3f803f80')
    for ks in range(16):
        for sl in range(3):
            e(f'v_mfma_f32_16x16x32_bf16 {v(UU+4*sl,4)}, {w1reg(sl,ks)}, {v(ONES,4)}, {"0" if ks == 0 else v(UU+4*sl,4)}')
    k.stamp(32)
    for sl in range(3):
        for h in range(2):
            for ins in unpack(TTv + 4 * sl + 2 * h, B1R + 2 * sl + h): e(ins)
    k.stamp(33)
    for dg in range(8):
        for sl in range(3):
            for h in range(2):
                e(f'v_pk_add_f32 {v(TTv+4*sl+2*h,2)}, {v(TTv+4*sl+2*h,2)}, {v(tpreg(dg,sl)+2*h,2)}')
    e(f'v_lshrrev_b32 v1, 3, {v(V_L)}'); e('v_and_b32 v7, 7, v0'); e('v_and_b32 v112, 2, v1'); e('v_xor_b32 v7, v7, v112')
    e(f's_and_b32 s3, {W}, 1'); e('s_lshl_b32 s3, s3, 2'); e('v_xor_b32 v7, s3, v7')
    e('v_lshlrev_b32 v1, 12, v1'); e('v_lshl_add_u32 v1, v7, 4, v1')
    e(f's_lshl_b32 s16, {W}, 15'); e('s_lshl_b32 s17, s8, 7'); e('s_add_u32 s16, s16, s17'); e(f's_add_u32 s16, s16, {WS_X1T}')
    e(f's_lshl_b32 s17, {W}, 10')
    e(f'v_lshl_add_u32 v7, {v(V_G)}, 3, {v(V_R)}'); e('v_lshlrev_b32 v7, 7, v7'); e(f'v_lshl_add_u32 v7, {v(V_C)}, 3, v7')
    e(f'v_lshrrev_b32 v112, 1, {v(V_R)}'); e(f'v_and_b32 v113, 1, {v(V_G)}'); e('v_lshl_add_u32 v112, v113, 1, v112')
    for rt in range(4):
        e(f's_add_u32 s3, {W}, {rt}'); e('s_and_b32 s3, s3, 3')
        e('v_xor_b32 v113, s3, v112'); e(f'v_lshl_add_u32 {v(VT+rt)}, v113, 5, v7')
    k.stamp(18)
    poll_wait(k, 3, 243, 252)
    e('s_barrier')
    k.stamp(19)
    for ks in range(16):
        e('s_mov_b32 m0, s17')
        e(f'buffer_load_dwordx4 v1, {WS}, s16 offen {SCL} lds', tag=f'xt{ks>>2}')
        if ks < 15: e('s_add_u32 s16, s16, 0x20000'); e('s_add_u32 s17, s17, 4096')
    def aload(ks):
        o = []
        for rt in range(4):
            b = AF + 16 * (ks & 1) + 4 * rt
            o += [f'ds_read_b64_tr_b16 {v(b,2)}, {v(VT+rt)} offset:{4096*ks}', f'ds_read_b64_tr_b16 {v(b+2,2)}, {v(VT+rt)} offset:{4096*ks+512}']
        return o
    def statfin():
        o = [f'v_cmp_eq_u32 vcc, 1, {v(V_C)}', f'v_cndmask_b32 {v(GR)}, {v(GR)}, {v(GR+1)}, vcc',
             f'v_cmp_eq_u32 vcc, 2, {v(V_C)}', f'v_cndmask_b32 {v(GR)}, {v(GR)}, {v(GR+2)}, vcc',
             f'v_cmp_eq_u32 vcc, 3, {v(V_C)}', f'v_cndmask_b32 {v(GR)}, {v(GR)}, {v(GR+3)}, vcc',
             's_mov_b32 s3, 0x3b000000',
             f'v_mul_f32 {v(SM)}, s3, {v(SM)}', f'v_mul_f32 {v(GR)}, s3, {v(GR)}',
             f'v_fma_f32 {v(GR)}, -{v(SM)}, {v(SM)}, {v(GR)}', f'v_max_f32 {v(GR)}, 0, {v(GR)}',
             f'v_cvt_pk_bf16_f32 {v(GR)}, 0, {v(GR)}', f'v_add_f32 {v(GR)}, 0x3727c5ac, {v(GR)}',
             f'v_cvt_pk_bf16_f32 {v(GR)}, 0, {v(GR)}', f'v_sqrt_f32 {v(GR)}, {v(GR)}',
             f'v_cvt_pk_bf16_f32 {v(GR)}, 0, {v(GR)}', f'v_rcp_f32 {v(GR)}, {v(GR)}',
             f'v_cvt_pk_bf16_f32 {v(SM)}, 0, {v(SM)}', f'v_mul_f32 {v(GR+1)}, -{v(SM)}, {v(GR)}',
             'v_and_b32 v1, 15, v0', f's_lshl_b32 s3, {W}, 7', f's_add_u32 s3, s3, {L_ST}', 'v_lshl_add_u32 v7, v1, 3, s3',
             's_mov_b32 s6, 0x00f0000f', 's_mov_b32 s7, 0xf0000f00',
             f's_mov_b64 exec, s[6:7]\nds_write_b64 v7, {v(GR,2)}\ns_mov_b64 exec, -1', 's_waitcnt lgkmcnt(0)\ns_barrier']
        for rt in range(4):
            o += [f's_add_u32 s3, {W}, {rt}', 's_and_b32 s3, s3, 3', 's_lshl_b32 s3, s3, 7', f's_add_u32 s3, s3, {L_ST}',
                  'v_lshl_add_u32 v7, v1, 3, s3', f'ds_read_b64 {v(ST+2*rt,2)}, v7']
        return o
    k.wait_tag('xt0')
    e('s_barrier')
    k.stamp(20)
    e('\n'.join(aload(0)))
    for ks in range(16):
        f = []
        if ks & 3 == 3 and ks < 15:
            f += [f'@wait_tag xt{(ks>>2)+1}', 's_barrier']
        if ks < 15: f += aload(ks + 1)
        b0 = AF + 16 * (ks & 1)
        if ks in (4, 8, 12): k.stamp(40 + ks // 4)
        e(f'v_mfma_f32_16x16x32_bf16 {v(GR,4)}, {v(b0,4)}, {v(b0,4)}, {"0" if ks == 0 else v(GR,4)}')
        e(f'v_mfma_f32_16x16x32_bf16 {v(SM,4)}, {v(ONES,4)}, {v(b0,4)}, {"0" if ks == 0 else v(SM,4)}')
        if ks == 15: f = [None] * 2 + statfin()
        per = -(-len(f) // 12); i = 0
        for sl in range(3):
            if ks >= 1 and w2q:
                for _ in range(1 if (ks * 3 + sl) % W2_SKIP else 0):
                    while w2q:
                        ins = w2q.pop(0); e(ins)
                        if ins.startswith('buffer'): break
            for rt in range(4):
                c = G_ACC + 16 * sl + 4 * rt
                e(f'v_mfma_f32_16x16x32_bf16 {v(c,4)}, {w1reg(sl,ks)}, {v(b0+4*rt,4)}, {"0" if ks == 0 else v(c,4)}')
                for ins in f[i * per:(i + 1) * per]:
                    if ins and ins.startswith('@'): k.items.append(ins)
                    elif ins: e(ins)
                i += 1
    k.stamp(21)
    k.w2rest = w2q
    LO = 'op_sel:[0,0,0] op_sel_hi:[1,0,1]'; HI = 'op_sel:[0,1,0] op_sel_hi:[1,1,1]'
    e('s_mul_i32 s16, s8, 43'); e('s_add_u32 s17, s16, s13'); e('s_lshl_b32 s17, s17, 12'); e(f's_add_u32 s17, s17, {WS_HP}')
    e('s_add_u32 s19, s16, s14'); e('s_lshl_b32 s19, s19, 12'); e(f's_and_b32 s3, {W}, 1'); e('s_lshl_b32 s3, s3, 3')
    e('s_add_u32 s19, s19, s3'); e(f's_add_u32 s19, s19, {WS_HP}')
    e('s_cmp_lt_u32 s14, 43'); e(f's_cselect_b32 s19, s19, {BIG}')
    for rt in range(4):
        e(f's_add_u32 s3, {W}, {rt}'); e('s_and_b32 s3, s3, 3'); e('s_lshl_b32 s3, s3, 10')
        e(f'v_add_u32 {v(VT+rt)}, s3, {v(V_L16)}')
    CT = 120; PK = AF
    for rt in range(4):
        for sl in range(3):
            c = G_ACC + 16 * sl + 4 * rt; pk = PK + 8 * rt + 2 * sl
            for h in range(2): e(f'v_pk_fma_f32 {v(CT+2*h,2)}, {v(UU+4*sl+2*h,2)}, {v(ST+2*rt,2)}, {v(TTv+4*sl+2*h,2)} {HI}')
            for h in range(2): e(f'v_pk_fma_f32 {v(c+2*h,2)}, {v(c+2*h,2)}, {v(ST+2*rt,2)}, {v(CT+2*h,2)} {LO}')
            for r in range(4): e(f'v_max_f32 {v(c+r)}, 0, {v(c+r)}')
            for h in range(2): e(f'v_pk_mul_f32 {v(c+2*h,2)}, {v(c+2*h,2)}, {v(c+2*h,2)}')
            for h in range(2): e(f'v_cvt_pk_bf16_f32 {v(pk+h)}, {v(c+2*h)}, {v(c+2*h+1)}')
            if sl == 1: e(f'buffer_store_dwordx4 {v(PK+8*rt,4)}, {v(VT+rt)}, {WS}, s17 offen {SC}')
            if sl == 2: e(f'buffer_store_dwordx2 {v(PK+8*rt+4,2)}, {v(VT+rt)}, {WS}, s19 offen {SC}', tag='hp')
    k.stamp(22)

def phase4(k):
    e = k.e
    GB = 8; B2 = 24; X1 = 40; XU = 48; A4 = 64
    k.wait_tag('hp')
    e('s_barrier')
    set_flag(k, 4, 56)
    k.stamp(23)
    for ins in k.w2rest: e(ins)
    e(f'v_lshlrev_b32 v1, 6, {v(V_G)}')
    e('s_lshl_b32 s16, s9, 8'); e(f's_add_u32 s16, s16, {WS_MODP + 5*2048}')
    for part in range(4):
        for j in range(4): e(f'buffer_load_dwordx4 {v(64+16*part+4*j,4)}, v1, {WS}, s16 offen offset:{16*j} {SCL}')
        if part < 3: e('s_add_u32 s16, s16, 12288')
    srd(k, T1, P_B2, 1024)
    e(f'v_lshlrev_b32 v7, 5, {v(V_G)}'); e('s_lshl_b32 s16, s9, 7')
    for j in range(2): e(f'buffer_load_dwordx4 {v(X1+4*j,4)}, v7, {S4(T1)}, s16 offen offset:{16*j}')
    if MAPB:
        e(f'v_lshrrev_b32 v243, 2, {v(V_L)}'); e(f'v_lshl_add_u32 v243, {v(V_C)}, 3, v243')
        e('s_lshr_b32 s3, s8, 3'); e('s_lshl_b32 s3, s3, 1'); e('s_and_b32 s6, s8, 7'); e('s_lshl_b32 s6, s6, 5'); e('s_add_u32 s3, s3, s6')
        e('v_add_u32 v243, s3, v243'); e('v_lshlrev_b32 v243, 6, v243')
    else:
        e('s_lshl_b32 s3, s8, 6'); e(f'v_lshl_add_u32 v243, {v(V_L)}, 11, s3')
    poll_issue(k, 4, 243, 252, 1, 8)
    for h in range(8): e(f'v_pk_add_f32 {v(64+2*h,2)}, {v(64+2*h,2)}, {v(80+2*h,2)}')
    for h in range(8): e(f'v_pk_add_f32 {v(96+2*h,2)}, {v(96+2*h,2)}, {v(112+2*h,2)}')
    for h in range(8): e(f'v_pk_add_f32 {v(GB+2*h,2)}, {v(64+2*h,2)}, {v(96+2*h,2)}')
    for r in range(16): rnd(k, GB + r)
    for j in range(8):
        for ins in unpack(B2 + 2 * j, X1 + j): e(ins)
    e(f'v_lshl_add_u32 v1, {v(V_G)}, 4, {v(V_R)}'); e('v_lshlrev_b32 v1, 7, v1'); e(f'v_lshl_add_u32 v1, {v(V_C)}, 3, v1')
    e('s_lshl_b32 s16, s9, 13'); e(f's_add_u32 s16, s16, {X1BASE}'); e('v_add_u32 v1, s16, v1')
    e(f'v_lshrrev_b32 v7, 1, {v(V_R)}'); e(f'v_xor_b32 v7, {W}, v7')
    e('v_lshl_add_u32 v56, v7, 5, v1'); e('v_xor_b32 v7, 2, v7'); e('v_lshl_add_u32 v57, v7, 5, v1')
    for i in range(4): e(f'ds_read_b64_tr_b16 {v(X1+2*i,2)}, {"v57" if i >= 2 else "v56"} offset:{512*i}')
    for j in range(8):
        for ins in unpack(XU + 2 * j, X1 + j): e(ins)
    for r in range(1, 4):
        e(f's_add_u32 s3, {W}, {r}'); e('s_and_b32 s3, s3, 3'); e('s_mul_i32 s3, s3, 12288'); e(f's_add_u32 s3, s3, {L_RED+(r-1)*4096}')
        e(f'v_add_u32 {v(248+r)}, s3, {v(V_L16)}')
    e(f's_mul_i32 s3, {W}, 12288'); e(f's_add_u32 s3, s3, {L_RED}'); e(f'v_add_u32 v248, s3, {v(V_L16)}')
    e('s_mul_i32 s16, s8, 43'); e(f's_add_u32 s16, s16, {W}'); e('s_lshl_b32 s16, s16, 12'); e(f's_add_u32 s16, s16, {WS_HP}')
    srd(k, T1, P_OUT, 2 * MB)
    e('v_and_b32 v1, 15, v0'); e('v_lshlrev_b32 v1, 17, v1'); e(f'v_lshl_add_u32 v1, {v(V_G)}, 5, v1')
    e('s_lshl_b32 s17, s8, 2'); e(f's_add_u32 s17, s17, {W}'); e('s_lshl_b32 s17, s17, 10'); e('s_lshl_b32 s3, s9, 7'); e('s_add_u32 s17, s17, s3')
    poll_wait(k, 4, 243, 252, 1, 8)
    k.stamp(24)
    def hloads(i):
        o = []
        if i == 10: o += [f's_cmp_eq_u32 {W}, 3\ns_cselect_b32 s16, {BIG}, s16']
        o += [f'buffer_load_dwordx4 {hreg(i,j)}, {v(VT+j)}, {WS}, s16 offen {SCL}' for j in range(4)]
        if i < 10: o[-1] += '\ns_add_u32 s16, s16, 16384'
        return o
    for i in range(H_AHEAD): e('\n'.join(hloads(i)))
    k.stamp(25)
    for i in range(11):
        f = hloads(i + H_AHEAD) if i + H_AHEAD < 11 else []
        for rt in range(4):
            for dt in range(4):
                c = A4 + 16 * rt + 4 * dt
                e(f'v_mfma_f32_16x16x32_bf16 {v(c,4)}, {w2reg(i,dt)}, {hreg(i,rt)}, {"0" if i == 0 else v(c,4)}')
                if f and dt == 0: e(f.pop(0))
            if f and rt == 3:
                for ins in f: e(ins)
    k.stamp(26)
    for rt in range(1, 4):
        for dt in range(4): e(f'ds_write_b128 {v(248+rt)}, {v(A4+16*rt+4*dt,4)} offset:{1024*dt}')
    e('s_waitcnt lgkmcnt(0)')
    e('s_barrier')
    RD = 128
    for j in range(3):
        for dt in range(4): e(f'ds_read_b128 {v(RD+16*j+4*dt,4)}, v248 offset:{4096*j+1024*dt}')
    for j in range(3):
        for h in range(8): e(f'v_pk_add_f32 {v(A4+2*h,2)}, {v(A4+2*h,2)}, {v(RD+16*j+2*h,2)}')
    if EX_OUT:
        for r in range(16): rnd(k, A4 + r)
    for h in range(8): e(f'v_pk_add_f32 {v(A4+2*h,2)}, {v(A4+2*h,2)}, {v(B2+2*h,2)}')
    if EX_OUT:
        for r in range(16): rnd(k, A4 + r)
        for h in range(8): e(f'v_pk_mul_f32 {v(A4+2*h,2)}, {v(A4+2*h,2)}, {v(GB+2*h,2)}')
        for r in range(16): rnd(k, A4 + r)
        for h in range(8): e(f'v_pk_add_f32 {v(A4+2*h,2)}, {v(A4+2*h,2)}, {v(XU+2*h,2)}')
    else:
        for h in range(8): e(f'v_pk_fma_f32 {v(A4+2*h,2)}, {v(A4+2*h,2)}, {v(GB+2*h,2)}, {v(XU+2*h,2)}')
    for h in range(8): e(f'v_cvt_pk_bf16_f32 {v(X1+h)}, {v(A4+2*h)}, {v(A4+2*h+1)}')
    for j in range(2): e(f'buffer_store_dwordx4 {v(X1+4*j,4)}, v1, {S4(T1)}, s17 offen offset:{16*j}')
    k.stamp(27)

def build_mega():
    k = Kern(NAME); k.kidx = 0; k.wsreg = P_WS
    k.stamp_init()
    k.e('s_load_dwordx16 s[8:23], s[0:1], 0')
    k.e('s_load_dwordx16 s[24:39], s[0:1], 64')
    k.e('v_lshrrev_b32 v1, 6, v0')
    k.e(f'v_readfirstlane_b32 {W}, v1')
    k.e(f's_mov_b32 {MASK}, 0xffff0000')
    k.e('s_cmp_ge_u32 s2, 256')
    k.e('s_cbranch_scc1 MEGA_END ;@nowait')
    phase1(k); phase2(k); phase3(k); phase4(k)
    k.end()
    k.label('MEGA_END')
    k.e('s_endpgm')

    return k, dict(vgpr=512, sgpr=84, accum=256, grid=256, block=256, lds=LDS_BYTES)
```

```python
from asmgen import *
from layout import *
import mega as M0
from mega import (NAME, srd, srd_l, S4, rnd, R2, unpack, set_flag, set_flag_wave, poll_issue, poll_wait, wave_reduce_sum, ilv,
                  P_Q, P_K, P_V, P_SK, P_SSM, P_D, P_W1, P_B1, P_W2, P_B2, P_C, P_WM, P_OUT, P_DBG, P_WS, WS, T1, T2, T3, T4, NONCE, W, MASK,
                  V_L, V_G, V_R, V_C, V_L16, WS_FL, WS_SIZE, BIG, SC, SCL, FL_0W, w1reg, w2reg, hreg, _lbl)
EX_KV = False; EX_X1 = False; EX_OUT = False
MAPB = False
CODE_LAST_CHUNK = 0x4000
W1_PACE = 3; W1_BEFORE_F3 = 4; W2_EARLY = 12; W2_SKIP = 6; H_AHEAD = 5
F2_SET = 4; F2_STAGE = 8
WS_X1C = WS_X1R
L_H = 0; L_X = 8320; L_O = 16896; TQS = 2176
L_KVT = 34304; L_QT = 43520; L_WM = 51712; L_SC = 68096; L_W2R = 69120; L_W1R = 77312
L_XC = 0; L_X1 = 65536; L_ST = 131072; L_CB = 131584; L_RED = 0; LDS_BYTES = 133632

def phase1(k):
    e = k.e
    e('; ================= phase 1 =================')
    e(f'v_and_b32 {v(V_L)}, 63, v0'); e(f'v_lshrrev_b32 {v(V_G)}, 4, {v(V_L)}'); e(f'v_bfe_u32 {v(V_R)}, v0, 2, 2')
    e(f'v_and_b32 {v(V_C)}, 3, v0'); e(f'v_lshlrev_b32 {v(V_L16)}, 4, {v(V_L)}')
    e('v_and_b32 v7, 7, v0'); e(f'v_lshrrev_b32 v8, 3, {v(V_L)}')
    e('s_getpc_b64 s[6:7]')
    e('s_lshr_b32 s3, s2, 3'); e('s_and_b32 s3, s3, 7'); e('s_lshl_b32 s3, s3, 2'); e(f's_add_u32 s3, s3, {W}'); e('s_lshl_b32 s3, s3, 10')
    e(f's_min_u32 s3, s3, {CODE_LAST_CHUNK}')
    e(f'v_add_u32 v9, s3, {v(V_L16)}')
    e('global_load_dwordx4 v[252:255], v9, s[6:7]')
    e('s_lshr_b32 s62, s2, 2'); e('s_and_b32 s63, s2, 3')
    e('s_lshr_b32 s66, s2, 3'); e('s_and_b32 s67, s2, 7')
    e('s_and_b32 s72, s2, 31'); e('s_lshr_b32 s73, s2, 5')
    e('s_lshl_b32 s74, s72, 3'); e('s_add_u32 s74, s74, s73')
    e('s_lshl_b32 s68, s66, 16'); e('s_lshl_b32 s69, s67, 7'); e('s_add_u32 s68, s68, s69'); e('s_sub_u32 s68, s68, 3072')
    e('v_lshrrev_b32 v12, 3, v0')
    e('v_lshlrev_b32 v13, 11, v12'); e('v_lshl_add_u32 v13, v7, 4, v13'); e('v_add_u32 v13, s68, v13')
    e('v_add_u32 v14, 0x400, v13'); e('v_add_u32 v15, 0x800, v13'); e('v_add_u32 v16, 0xc00, v13')
    e('v_lshlrev_b32 v17, 6, v7')
    e('v_lshlrev_b32 v100, 17, v8'); e('v_lshl_add_u32 v100, v7, 4, v100')
    e('s_lshl_b32 s64, s72, 2'); e(f's_add_u32 s64, s64, {W}'); e('s_lshl_b32 s64, s64, 10'); e('s_lshl_b32 s65, s73, 7'); e('s_add_u32 s64, s64, s65')
    e(f's_lshl_b32 s65, {W}, 11'); e(f's_add_u32 s65, s65, {L_QT}'); e('s_mov_b32 m0, s65')
    e('s_lshr_b32 s68, s74, 1'); e('s_and_b32 s69, s74, 1'); e('s_lshl_b32 s69, s69, 3'); e(f's_lshl_b32 s3, {W}, 1')
    e('s_add_u32 s69, s69, s3'); e('s_lshl_b32 s69, s69, 7'); e('s_add_u32 s69, s69, s68'); e('s_lshl_b32 s69, s69, 10')
    e('s_lshl_b32 s68, s67, 9')
    e('s_waitcnt lgkmcnt(0)')
    k.stamp(1)
    srd(k, T1, P_K, 2 * MB); srd(k, T2, P_V, 2 * MB); srd(k, T3, P_SK, 4096); srd(k, T4, P_Q, 2 * MB)
    KR = 128; VR = 148; WR = 156; SR = 172
    e(f'buffer_load_dwordx4 {v(KR+12,4)}, v16, {S4(T1)}, 0 offen')
    e(f'buffer_load_dwordx4 {v(KR+16,4)}, v16, {S4(T1)}, 0 offen offset:1024')
    e(f'buffer_load_dwordx4 {v(VR,4)}, v16, {S4(T2)}, 0 offen')
    e(f'buffer_load_dwordx4 {v(VR+4,4)}, v16, {S4(T2)}, 0 offen offset:1024')
    for j in range(4): e(f'buffer_load_dwordx4 {v(WR+4*j,4)}, v17, {S4(T3)}, s68 offen offset:{16*j}')
    e(f'buffer_load_dwordx4 {v(KR+0,4)}, v13, {S4(T1)}, 0 offen')
    e(f'buffer_load_dwordx4 {v(KR+4,4)}, v14, {S4(T1)}, 0 offen')
    e(f'buffer_load_dwordx4 {v(KR+8,4)}, v15, {S4(T1)}, 0 offen')
    e(f'buffer_load_dwordx4 v100, {S4(T4)}, s64 offen lds')
    e('s_add_u32 s64, s64, 0x100000'); e('s_add_u32 s65, s65, 1024'); e('s_mov_b32 m0, s65')
    e(f'buffer_load_dwordx4 v100, {S4(T4)}, s64 offen lds', tag='qd')
    e(f'buffer_load_dwordx4 {v(SR,4)}, {v(V_L16)}, {S4(T4)}, s69 offen')
    e('s_add_u32 s69, s69, 0x20000')
    e(f'buffer_load_dwordx4 {v(SR+4,4)}, {v(V_L16)}, {S4(T4)}, s69 offen')
    e(f's_mov_b32 s40, s{P_WS}'); e(f's_mov_b32 s41, s{P_WS+1}'); e(f's_mov_b32 s42, {WS_SIZE}'); e('s_mov_b32 s43, 0x20000')
    srd(k, T4, P_DBG, 256)
    e(f's_or_b32 s3, s2, {W}')
    e('s_cmp_lg_u32 s3, 0')
    e('s_cbranch_scc1 NONCE_SKIP ;@nowait')
    e('s_memrealtime s[60:61]')
    e('s_waitcnt lgkmcnt(0)')
    e('s_or_b32 s60, s60, 1')
    e('v_mov_b32 v20, s60'); e('v_mov_b32 v21, s61'); e('v_mov_b32 v22, 0')
    e('s_mov_b64 exec, 1')
    e(f'buffer_store_dwordx2 v[20:21], v22, {S4(T4)}, 0 offen {SC} ;@nocount')
    e('s_mov_b64 exec, -1')
    e('NONCE_SKIP: ;@keep')
    k.stamp(2)
    e('s_lshl_b32 s3, s2, 2'); e(f's_add_u32 s6, s{P_D}, s3'); e(f's_addc_u32 s7, s{P_D+1}, 0')
    e('s_load_dword s81, s[6:7], 0')
    e('v_mul_u32_u24 v9, 6144, v8'); e('v_lshl_add_u32 v9, v7, 4, v9')
    e(f'v_lshlrev_b32 v10, 2, {v(V_L)}')
    e('v_lshlrev_b32 v101, 10, v8'); e('v_lshl_add_u32 v101, v7, 4, v101')
    e(f'v_lshrrev_b32 v102, 2, {v(V_L)}'); e('v_mul_u32_u24 v102, 2752, v102'); e(f'v_lshl_add_u32 v102, {v(V_C)}, 4, v102')
    e('v_mov_b32 v56, 0')
    GW = [srd_l(T2, P_C, 1024) + ['s_lshl_b32 s64, s63, 8', f'buffer_load_dword v11, v10, {S4(T2)}, s64 offen'] + srd_l(T1, P_WM, 3 * MB) +
          ['s_lshl_b32 s64, s63, 2', f's_add_u32 s64, s64, {W}', f's_mul_i32 s64, s64, {32*6144}', 's_lshl_b32 s65, s62, 7', 's_add_u32 s64, s64, s65',
           f's_lshl_b32 s65, {W}, 12', f's_add_u32 s65, s65, {L_WM}', 's_mov_b32 m0, s65', f'buffer_load_dwordx4 v9, {S4(T1)}, s64 offen lds']]
    for i in range(3):
        GW.append([f's_add_u32 s64, s64, {8*6144}', 's_add_u32 s65, s65, 1024', 's_mov_b32 m0, s65', f'buffer_load_dwordx4 v9, {S4(T1)}, s64 offen lds'])
    GW.append([f'buffer_load_dwordx2 v[58:59], v56, {S4(T4)}, 0 offen {SC}'])
    GS = [srd_l(T1, P_SSM, 2 * MB) + ['s_lshl_b32 s64, s2, 13', f's_lshl_b32 s65, {W}, 11', 's_add_u32 s64, s64, s65', f's_lshr_b32 s68, {W}, 1',
          's_lshl_b32 s68, s68, 6', 's_add_u32 s65, s65, s68', f's_add_u32 s65, s65, {L_H+64}', 's_mov_b32 m0, s65',
          f'buffer_load_dwordx4 {v(V_L16)}, {S4(T1)}, s64 offen lds'],
          [f'buffer_load_dwordx4 {v(V_L16)}, {S4(T1)}, s64 offen offset:1024 lds']]
    GP = [srd_l(T1, P_W1, 512 * 2752) + ['s_lshl_b32 s64, s67, 2', f's_add_u32 s64, s64, {W}', f's_mul_i32 s64, s64, {16*2752}',
          's_lshl_b32 s65, s66, 6', 's_add_u32 s64, s64, s65', f's_lshl_b32 s65, {W}, 10', f's_add_u32 s65, s65, {L_W1R}', 's_mov_b32 m0, s65',
          f'buffer_load_dwordx4 v102, {S4(T1)}, s64 offen lds'],
          ['s_add_u32 s64, s64, 2048', 's_add_u32 s65, s65, 4096', 's_mov_b32 m0, s65', f'buffer_load_dwordx4 v102, {S4(T1)}, s64 offen lds'],
          srd_l(T3, P_W2, 1376 * 1024) + ['s_lshl_b32 s64, s66, 15', f's_lshl_b32 s65, {W}, 13', 's_add_u32 s64, s64, s65', 's_lshl_b32 s65, s67, 7',
          's_add_u32 s64, s64, s65', f's_lshl_b32 s65, {W}, 10', f's_add_u32 s65, s65, {L_W2R}', 's_mov_b32 m0, s65',
          f'buffer_load_dwordx4 v101, {S4(T3)}, s64 offen lds'],
          ['s_add_u32 s64, s64, 0x100000', 's_add_u32 s65, s65, 4096', 's_mov_b32 m0, s65', f'buffer_load_dwordx4 v101, {S4(T3)}, s64 offen lds']]
    def spread(code, groups):
        groups = list(groups); step = max(1, len(code) // (len(groups) + 1))
        for i, ins in enumerate(code):
            e(ins)
            if groups and (i + 1) % step == 0: e('\n'.join(groups.pop(0)))
        for g in groups: e('\n'.join(g))
    e(f'v_lshl_add_u32 v13, {v(V_R)}, 2, {v(V_G)}'); e('v_mul_u32_u24 v13, 144, v13'); e(f'v_lshl_add_u32 v13, {v(V_C)}, 3, v13')
    e(f's_lshl_b32 s64, {W}, 5'); e('v_add_u32 v13, s64, v13')
    e(f'v_lshl_add_u32 v14, {v(V_G)}, 4, {v(V_R)}'); e('v_lshlrev_b32 v14, 7, v14'); e(f'v_lshl_add_u32 v14, {v(V_C)}, 3, v14'); e('v_add_u32 v14, s64, v14')
    e('v_and_b32 v15, 15, v0'); e('v_lshlrev_b32 v15, 12, v15')
    e(f'v_lshl_add_u32 v16, {v(V_G)}, 4, v15'); e(f'v_lshl_add_u32 v15, {v(V_G)}, 5, v15')
    e(f's_lshl_b32 s65, {W}, 16')
    e('s_lshl_b32 s75, s67, 18'); e('s_add_u32 s75, s75, s65'); e('s_lshl_b32 s3, s66, 7'); e('s_add_u32 s75, s75, s3')
    e('s_lshl_b32 s82, s73, 18'); e('s_add_u32 s82, s82, s65'); e('s_lshl_b32 s3, s72, 7'); e('s_add_u32 s82, s82, s3'); e(f's_add_u32 s82, s82, {WS_QT}')
    e('v_mul_u32_u24 v18, 288, v12'); e('v_lshl_add_u32 v18, v7, 4, v18')
    KF = 60; VF = 70; WF = 74; P = 82; Q = 86; OUT = 92
    kvc = []; c = kvc.append
    for u in range(4):
        for j in range(4):
            for h in range(2):
                src = WR + 4 * u + 2 * h + (j >> 1)
                c(f'v_and_b32 {v(WF+2*j+h)}, {MASK}, {v(src)}' if j & 1 else f'v_lshlrev_b32 {v(WF+2*j+h)}, 16, {v(src)}')
        for i in range(5): kvc += unpack(KF + 2 * i, KR + 4 * i + u)
        for o in range(2): c(f'v_pk_mul_f32 {v(P+2*o,2)}, {v(KF+2*o,2)}, {v(WF+6,2)}')
        for t in range(1, 4):
            if EX_KV:
                for o in range(2): c(f'v_pk_mul_f32 {v(Q+2*o,2)}, {v(KF+2*(o+t),2)}, {v(WF+2*(3-t),2)}')
                kvc += R2(P) + R2(P + 2) + R2(Q) + R2(Q + 2)
                for o in range(2): c(f'v_pk_add_f32 {v(P+2*o,2)}, {v(P+2*o,2)}, {v(Q+2*o,2)}')
            else:
                for o in range(2): c(f'v_pk_fma_f32 {v(P+2*o,2)}, {v(KF+2*(o+t),2)}, {v(WF+2*(3-t),2)}, {v(P+2*o,2)}')
        for o in range(2): kvc += unpack(VF + 2 * o, VR + 4 * o + u)
        kvc += R2(P) + R2(P + 2)
        for o in range(2): c(f'v_pk_mul_f32 {v(P+2*o,2)}, {v(P+2*o,2)}, {v(VF+2*o,2)}')
        for o in range(2): c(f'v_cvt_pk_bf16_f32 {v(OUT+4*o+u)}, {v(P+2*o)}, {v(P+2*o+1)}')
    for g in GW[:GW_EARLY]: e('\n'.join(g))
    spread(kvc, GW[GW_EARLY:])
    e(f'ds_write_b128 v18, {v(OUT,4)} offset:{L_KVT}')
    e(f'ds_write_b128 v18, {v(OUT+4,4)} offset:{L_KVT+144}')
    k.stamp(4)
    k.wait_tag('qd')
    e('s_waitcnt lgkmcnt(0)')
    e('s_barrier')
    for blk in range(2):
        for half in range(2):
            e(f'ds_read_b64_tr_b16 {v(20+4*blk+2*half,2)}, v13 offset:{L_KVT+(32*blk+16*half)*144}')
    for Th in range(2):
        for half in range(2):
            e(f'ds_read_b64_tr_b16 {v(28+4*Th+2*half,2)}, v14 offset:{L_QT+(8*Th+4*half)*128}')
    for blk in range(2): e(f'buffer_store_dwordx4 {v(20+4*blk,4)}, v16, {WS}, s75 offen offset:{64*blk} {SC}')
    for Th in range(2): e(f'buffer_store_dwordx4 {v(28+4*Th,4)}, v15, {WS}, s82 offen offset:{16*Th} {SC}')
    k.stamp(5)
    st = []; c = st.append; F0 = 60
    for i in range(2):
        for u in range(4): st += unpack(F0 + 8 * i + 2 * u, SR + 4 * i + u)
    for i in range(2):
        F = F0 + 8 * i; T = 76 + 4 * i
        c(f'v_pk_add_f32 {v(T,2)}, {v(F,2)}, {v(F+2,2)}'); c(f'v_pk_add_f32 {v(T+2,2)}, {v(F+4,2)}, {v(F+6,2)}')
        c(f'v_pk_add_f32 {v(T,2)}, {v(T,2)}, {v(T+2,2)}'); c(f'v_add_f32 {v(T)}, {v(T)}, {v(T+1)}')
    st += ilv(wave_reduce_sum(76, 70), wave_reduce_sum(80, 71))
    c('s_mov_b32 s3, 0x3b000000')
    for i in range(2):
        c(f'v_mov_b32 {v(84+i)}, s{70+i}'); c(f'v_mul_f32 {v(84+i)}, s3, {v(84+i)}')
    for i in range(2):
        F = F0 + 8 * i; T = 76 + 4 * i
        for u in range(4): c(f'v_pk_add_f32 {v(F+2*u,2)}, {v(F+2*u,2)}, {v(84,2)} op_sel:[0,{i}] op_sel_hi:[1,{i}] neg_lo:[0,1] neg_hi:[0,1]')
        c(f'v_pk_mul_f32 {v(T,2)}, {v(F,2)}, {v(F,2)}')
        for u in range(1, 4): c(f'v_pk_fma_f32 {v(T,2)}, {v(F+2*u,2)}, {v(F+2*u,2)}, {v(T,2)}')
        c(f'v_add_f32 {v(T)}, {v(T)}, {v(T+1)}')
    st += ilv(wave_reduce_sum(76, 70), wave_reduce_sum(80, 71))
    for i in range(2):
        c(f'v_mov_b32 {v(86+i)}, s{70+i}'); c(f'v_mul_f32 {v(86+i)}, s3, {v(86+i)}')
    st += R2(86)
    for i in range(2): c(f'v_add_f32 {v(86+i)}, 0x3727c5ac, {v(86+i)}')
    st += R2(86)
    for i in range(2): c(f'v_sqrt_f32 {v(86+i)}, {v(86+i)}')
    st += R2(86)
    for i in range(2): c(f'v_rcp_f32 {v(86+i)}, {v(86+i)}')
    st += R2(84)
    spread(st, GS)
    e('s_lshl_b32 s64, s74, 5'); e(f's_lshl_b32 s65, {W}, 3'); e('s_add_u32 s64, s64, s65'); e(f's_add_u32 s64, s64, {WS_ST1}')
    e('s_add_u32 s65, s64, 8192')
    e('s_mov_b64 exec, 1')
    e(f'buffer_store_dwordx2 v[84:85], v56, {WS}, s64 offen {SC}')
    e(f'buffer_store_dwordx2 v[86:87], v56, {WS}, s65 offen {SC}', tag='A')
    e('s_mov_b64 exec, -1')
    sl = unpack(14, 11) + ['s_mov_b32 s3, 0xbfb8aa3b']; c = sl.append
    for i in range(2): c(f'v_mul_f32 {v(16+i)}, s3, {v(14+i)}')
    for i in range(2): c(f'v_exp_f32 {v(16+i)}, {v(16+i)}')
    for i in range(2): c(f'v_add_f32 {v(16+i)}, 1.0, {v(16+i)}')
    for i in range(2): c(f'v_rcp_f32 {v(16+i)}, {v(16+i)}')
    for i in range(2): c(f'v_mul_f32 {v(14+i)}, {v(14+i)}, {v(16+i)}')
    c('v_cvt_pk_bf16_f32 v14, v14, v15')
    c(f's_lshl_b32 s3, {W}, 8'); c(f's_add_u32 s3, s3, {L_SC}'); c('v_add_u32 v10, s3, v10'); c('ds_write_b32 v10, v14')
    c(f'v_lshl_add_u32 v10, {v(V_G)}, 4, s3')
    c(f'v_lshl_add_u32 v17, {v(V_G)}, 3, {v(V_R)}')
    c('v_lshlrev_b32 v18, 7, v17'); c(f'v_lshl_add_u32 v18, {v(V_C)}, 3, v18')
    c(f's_lshl_b32 s3, {W}, 5'); c(f's_add_u32 s3, s3, {L_WM}'); c('v_add_u32 v18, s3, v18')
    c(f'v_lshlrev_b32 v19, 4, {v(V_G)}')
    spread(sl, GP[:GP_BEFORE_B3])
    e('s_mul_i32 s75, s63, 12288'); e('s_lshl_b32 s3, s62, 8'); e('s_add_u32 s75, s75, s3')
    e(f's_lshl_b32 s3, {W}, 6'); e('s_add_u32 s75, s75, s3'); e(f's_add_u32 s75, s75, {WS_MODP}')
    e('s_cmp_lt_u32 s2, 192'); e(f's_cselect_b32 s75, s75, {BIG}')
    e('s_mov_b32 s7, 0')
    e('NONCE_P: ;@keep')
    e('v_readfirstlane_b32 s60, v58'); e('v_readfirstlane_b32 s61, v59')
    e('s_add_u32 s7, s7, 1')
    e('s_cmp_gt_u32 s7, 20000')
    e('s_cbranch_scc1 NONCE_OK ;@nowait')
    e('s_cmp_lg_u32 s60, 0')
    e('s_cbranch_scc1 NONCE_OK ;@nowait')
    e(f'buffer_load_dwordx2 v[58:59], v56, {S4(T4)}, 0 offen {SC} ;@nocount')
    e('s_waitcnt vmcnt(0) ;@raw')
    e('s_branch NONCE_P ;@nowait')
    e('NONCE_OK: ;@keep')
    k.stamp(8)
    k.wait_tag('A')
    e('s_barrier')
    set_flag(k, 1, 88)
    k.stamp(6)
    for ks in range(4):
        e(f'ds_read_b128 {v(20+4*ks,4)}, v10 offset:{64*ks}')
        e(f'ds_read_b64_tr_b16 {v(36+4*ks,2)}, v18 offset:{4096*ks}')
        e(f'ds_read_b64_tr_b16 {v(38+4*ks,2)}, v18 offset:{4096*ks+512}')
    e('s_mov_b32 s68, 0x00010001'); e('s_mov_b32 s69, 0x00010001')
    for ks in range(4):
        e(f'v_mfma_f32_16x16x32_bf16 v[52:55], {v(36+4*ks,4)}, {v(20+4*ks,4)}, {"0" if ks == 0 else "v[52:55]"}')
    e('s_lshr_b32 s64, s2, 5'); e('s_lshl_b32 s64, s64, 6')
    e(f'v_lshl_add_u32 v13, {v(V_L)}, 9, s64')
    e('s_mov_b64 exec, s[68:69]')
    e(f'buffer_store_dwordx4 v[52:55], v19, {WS}, s75 offen {SC}', tag='mod')
    e('s_mov_b64 exec, -1')
    for g in GP[GP_BEFORE_B3:]: e('\n'.join(g))
    poll_issue(k, 1, 13, 58, 1, 32)
    M0.conv_prep(k)
    k.stamp(9)
    e(f's_lshr_b32 s68, {W}, 1'); e(f's_and_b32 s69, {W}, 1')
    e(f'v_lshl_add_u32 v14, {v(V_G)}, 2, {v(V_R)}'); e('v_lshlrev_b32 v14, 7, v14'); e(f'v_lshl_add_u32 v14, {v(V_C)}, 5, v14')
    e('s_lshl_b32 s64, s68, 12'); e('s_lshl_b32 s65, s69, 4'); e('s_add_u32 s64, s64, s65'); e(f's_add_u32 s64, s64, {L_W2R}'); e('v_add_u32 v14, s64, v14')
    e('v_lshlrev_b32 v15, 6, v17'); e(f'v_lshl_add_u32 v15, {v(V_C)}, 3, v15')
    e('s_lshl_b32 s64, s68, 12'); e('s_lshl_b32 s65, s69, 5'); e('s_add_u32 s64, s64, s65'); e(f's_add_u32 s64, s64, {L_W1R}'); e('v_add_u32 v15, s64, v15')
    e('s_lshl_b32 s64, s68, 5'); e('s_add_u32 s64, s64, s66')
    e('s_lshl_b32 s62, s64, 1'); e('s_add_u32 s62, s62, s69'); e('s_lshl_b32 s62, s62, 14'); e('s_lshl_b32 s3, s67, 11'); e('s_add_u32 s62, s62, s3'); e(f's_add_u32 s62, s62, {WS_W1P}')
    e('s_mul_i32 s63, s67, 43'); e('s_add_u32 s63, s63, s64'); e('s_lshl_b32 s63, s63, 12'); e('s_lshl_b32 s3, s69, 11'); e('s_add_u32 s63, s63, s3'); e(f's_add_u32 s63, s63, {WS_W2P}')
    e('s_cmp_lt_u32 s64, 43'); e(f's_cselect_b32 s62, s62, {BIG}'); e(f's_cselect_b32 s63, s63, {BIG}')
    k.wait_tag('mod')
    e(set_flag_wave(FL_0W, 88))
    k.stamp(10)
GW_EARLY = 1; GP_BEFORE_B3 = 2

ACC = 64; QR = 16; M = 24; R = ACC + 48
OV = 40; OIN = 48; KVR = 52; TT = 56; QF = 60; C0 = 12; C1 = 14; C2 = 208
VB = 7; VW = 8; VRD = 9; VKV = 10; VWR = 11; VP32 = 62; VP = 63

def gemm_ids(k):
    M0.MAPB = MAPB
    M0.gemm_ids(k)

V3 = False
def phase2_head(k):
    e = k.e
    e(f's_lshr_b32 s16, {W}, 1'); e(f's_and_b32 s17, {W}, 1')
    e('s_lshl_b32 s18, s2, 1'); e('s_add_u32 s18, s18, s16')
    e('s_lshl_b32 s19, s18, 12')
    e('s_lshl_b32 s64, s17, 11'); e('s_add_u32 s65, s19, s64')
    e('s_mul_i32 s20, s16, 4288'); e(f's_add_u32 s20, s20, {L_X}')
    e('s_add_u32 s64, s64, s20'); e('s_add_u32 s64, s64, 192')
    e('s_mov_b32 m0, s64')
    e('v_mov_b32 v210, v14'); e('v_mov_b32 v211, v15')
    poll_wait(k, 1, 13, 58, 1, 32)
    k.stamp(11)
    for i in range(2): e(f'buffer_load_dwordx4 {v(V_L16)}, {WS}, s65 offen offset:{1024*i} {SCL} lds', tag='kvp')

def phase2(k):
    e = k.e
    if not V3: phase2_head(k)
    e(f's_lshl_b32 s3, {W}, 12'); e(f'v_lshl_add_u32 v243, {v(V_L)}, 6, s3')
    if V3:
        e(f's_lshl_b32 s3, {W}, 14'); e(f'v_lshl_add_u32 v13, {v(V_L)}, 8, s3'); e('v_add_u32 v242, 64, v13')
        poll_issue(k, FL_0W, 13, 24); poll_issue(k, FL_0W, 242, 26)
    else: poll_issue(k, 1, 243, 24)
    e(f'v_cmp_eq_u32 vcc, 3, {v(V_R)}'); e(f'v_addc_co_u32 v12, vcc, 0, {v(V_R)}, vcc')
    if not V3:
        e(f'v_lshlrev_b32 v13, 5, v12'); e(f'v_add_u32 v13, v13, {v(V_C)}')
        e('s_lshr_b32 s3, s2, 5'); e('s_lshl_b32 s3, s3, 2'); e('v_add_u32 v13, s3, v13')
        e('s_lshr_b32 s6, s2, 3'); e('s_and_b32 s6, s6, 3'); e('v_lshl_add_u32 v13, v13, 2, s6'); e('v_lshlrev_b32 v13, 6, v13')
        poll_issue(k, FL_0W, 13, 26, 1, 16)
    else: e('v_mov_b32 v214, v242')
    e(f'v_mul_u32_u24 v57, 12288, {v(V_C)}'); e('v_lshl_add_u32 v57, v12, 11, v57')
    e('s_lshl_b32 s3, s17, 4')
    e(f'v_lshlrev_b32 {v(VP)}, 5, {v(V_C)}'); e(f'v_lshl_add_u32 {v(VP)}, {v(V_G)}, 2, {v(VP)}'); e(f'v_add3_u32 {v(VP)}, {v(VP)}, {v(V_R)}, s3')
    e(f'v_lshlrev_b32 {v(VP32)}, 5, {v(VP)}')
    e('s_lshl_b32 s3, s17, 6'); e(f'v_add_u32 v58, s3, {v(V_L)}')
    e(f'v_add_u32 v56, {v(V_C)}, {v(V_G)}'); e('v_lshlrev_b32 v56, 6, v56'); e(f'v_lshl_add_u32 v56, {v(V_R)}, 4, v56')
    e(f'v_add_u32 {v(VB)}, s20, v56')
    e(f'v_lshlrev_b32 v56, 5, {v(V_C)}'); e(f'v_lshl_add_u32 v56, {v(V_R)}, 3, v56')
    e('s_lshl_b32 s3, s17, 2'); e(f'v_add3_u32 v56, v56, {v(V_G)}, s3')
    e('s_add_u32 s3, s20, 192'); e(f'v_lshl_add_u32 {v(VKV)}, v56, 1, s3')
    e('s_mul_i32 s21, s16, 8704'); e(f's_add_u32 s21, s21, {L_O}')
    e('v_add_u32 v56, 16, v58'); e('v_subrev_u32 v59, 127, v56')
    e('v_cmp_lt_u32 vcc, 127, v56'); e('v_cndmask_b32 v56, v56, v59, vcc')
    e(f'v_cmp_lt_u32 vcc, 123, {v(VP)}'); e('s_mov_b64 s[22:23], vcc')
    e('v_mov_b32 v59, 133'); e('v_cndmask_b32 v56, v56, v59, vcc')
    e(f'v_lshl_add_u32 {v(VW)}, v56, 4, s21')
    e(f'v_add_u32 v56, 128, {v(V_R)}'); e(f'v_lshl_add_u32 {v(VWR)}, v56, 4, s21')
    e(f'v_cmp_gt_u32 vcc, 4, {v(VP)}'); e('v_cndmask_b32 v58, v58, v56, vcc')
    e(f'v_cmp_eq_u32 vcc, 3, {v(V_R)}'); e('v_mov_b32 v59, 132'); e('v_cndmask_b32 v58, v58, v59, vcc')
    e(f'v_lshl_add_u32 {v(VRD)}, v58, 4, s21')
    for i in range(4): e(f'v_mov_b32 {v(KVR+i)}, 0')
    gemm_ids(k)
    e(f'v_lshlrev_b32 v56, 6, {v(VP)}')
    e(f's_add_u32 s66, s19, {WS_QT}'); e(f's_mov_b32 s67, {WS_ST1}'); e(f's_mov_b32 s69, {WS_ST1+8192}')
    e('s_lshl_b32 s68, s18, 2'); e(f's_add_u32 s68, s68, {WS_MODP}')
    e(f's_add_u32 s26, s19, {WS_X1T}'); e(f's_add_u32 s30, s19, {WS_X1C}')
    k.stamp(12)
    k.wait_tag('kvp')
    e('s_waitcnt lgkmcnt(0)')
    e('s_barrier')
    if V3: set_flag(k, 2, 216)
    k.stamp(13)
    epl = [f'buffer_load_dword v58, v57, {WS}, s68 offen {SCL}', f'buffer_load_dwordx4 {v(QR,4)}, {v(VP32)}, {WS}, s66 offen {SCL}']
    for j in range(2): epl += [f'buffer_load_dwordx4 {v(M+4*j,4)}, v56, {WS}, s67 offen offset:{16*j} {SCL}', f'buffer_load_dwordx4 {v(R+4*j,4)}, v56, {WS}, s69 offen offset:{16*j} {SCL}']
    epl += [f'buffer_load_dwordx4 {v(QR+4,4)}, {v(VP32)}, {WS}, s66 offen offset:16 {SCL}']
    for j in range(2, 4): epl += [f'buffer_load_dwordx4 {v(M+4*j,4)}, v56, {WS}, s67 offen offset:{16*j} {SCL}', f'buffer_load_dwordx4 {v(R+4*j,4)}, v56, {WS}, s69 offen offset:{16*j} {SCL}']
    wp = []
    for i in range(2):
        wp += [f'ds_read_b64_tr_b16 {v(192+4*i,2)}, v211 offset:{2048*i}', f'ds_read_b64_tr_b16 {v(194+4*i,2)}, v211 offset:{2048*i+256}']
    for i in range(2):
        wp += [f'ds_read_b64_tr_b16 {v(200+4*i,2)}, v210 offset:{8*i}', f'ds_read_b64_tr_b16 {v(202+4*i,2)}, v210 offset:{8*i+2048}']
    wps = [f'buffer_store_dwordx4 {v(192+4*i,4)}, {v(V_L16)}, {WS}, s62 offen offset:{1024*i} {SC}' for i in range(2)]
    wps += [f'buffer_store_dwordx4 {v(200+4*i,4)}, {v(V_L16)}, {WS}, s63 offen offset:{1024*i} {SC} ;@tag=wp' for i in range(2)]
    LO = 'op_sel:[0,0] op_sel_hi:[1,0]'; HI = 'op_sel:[0,1] op_sel_hi:[1,1]'; LO3 = 'op_sel:[0,0,0] op_sel_hi:[1,0,1]'
    def ldB(i): return [f'ds_read_b128 {a(64+4*i,4)}, {v(VB)} offset:{256*i}']
    def consts():
        return ['v_add_f32_dpp v58, v58, v58 quad_perm:[1,0,3,2] row_mask:0xf bank_mask:0xf',
                'v_add_f32_dpp v58, v58, v58 quad_perm:[2,3,0,1] row_mask:0xf bank_mask:0xf',
                'v_cvt_pk_bf16_f32 v58, 0, v58', 'v_add_f32 v59, 1.0, v58', 'v_cvt_pk_bf16_f32 v59, 0, v59',
                'v_readlane_b32 s64, v58, 0', 'v_readlane_b32 s65, v59, 4', 'v_readlane_b32 s66, v58, 8', 'v_readlane_b32 s67, v59, 12',
                f'v_mov_b32 {v(C1)}, s64', f'v_mov_b32 {v(C0+1)}, s65', f'v_mov_b32 {v(C1+1)}, s66', f'v_mov_b32 {v(C2)}, s67',
                's_lshl_b32 s64, s81, 16', f's_and_b32 s65, s81, {MASK}', 's_cmp_eq_u32 s16, 0\ns_cselect_b32 s64, s64, s65',
                f'v_mov_b32 {v(C0)}, s64']
    def qchain(T):
        m = M + T; o = unpack(QF, QR + T // 2)
        o += [f'v_pk_add_f32 {v(m,2)}, {v(QF,2)}, {v(m,2)} neg_lo:[0,1] neg_hi:[0,1]'] + (R2(m) if EX_X1 else [])
        o += [f'v_pk_mul_f32 {v(m,2)}, {v(m,2)}, {v(R+T,2)}'] + (R2(m) if EX_X1 else [])
        if EX_X1:
            o += [f'v_pk_mul_f32 {v(m,2)}, {v(m,2)}, {v(C0,2)} {HI}'] + R2(m)
            o += [f'v_pk_add_f32 {v(m,2)}, {v(m,2)}, {v(C1,2)} {LO}'] + R2(m)
        else:
            o += [f'v_pk_fma_f32 {v(m,2)}, {v(m,2)}, {v(C0,2)}, {v(C1,2)} op_sel:[0,1,0] op_sel_hi:[1,1,0]']
            o += [f'v_pk_mul_f32 {v(m,2)}, {v(m,2)}, {v(C1,2)} {HI}']
        return o
    def dpp(T):
        z = ACC + 4 * T; ov = OV + 4 * ((T >> 2) & 1) + (T & 3)
        return [f'v_mov_b32_dpp {v(ov)}, {v(z+3)} row_ror:12 row_mask:0xf bank_mask:0x7',
                f'v_add_f32_dpp {v(z)}, {v(z+1)}, {v(z)} row_ror:4 row_mask:0xf bank_mask:0xe',
                f'v_add_f32_dpp {v(ov)}, {v(z+2)}, {v(ov)} row_ror:8 row_mask:0xf bank_mask:0x3',
                f'v_add_f32_dpp {v(z)}, {v(z+2)}, {v(z)} row_ror:8 row_mask:0xf bank_mask:0xc',
                f'v_add_f32_dpp {v(ov)}, {v(z+1)}, {v(ov)} row_ror:4 row_mask:0xf bank_mask:0x1',
                f'v_add_f32_dpp {v(z)}, {v(z+3)}, {v(z)} row_ror:12 row_mask:0xf bank_mask:0x8']
    def exchW(tq):
        ov = OV + 4 * (tq & 1); g = ['s_mov_b64 exec, s[22:23]']
        for j in range(4):
            T2 = 4 * tq + j + 1
            if T2 < 16: g.append(f'ds_write_b32 {v(VWR)}, {v(ov+j)} offset:{(T2>>2)*TQS+4*(T2&3)}')
        g += ['s_mov_b64 exec, -1']
        return [f'ds_write_b128 {v(VW)}, {v(ov,4)} offset:{tq*TQS}', '\n'.join(g), 's_waitcnt lgkmcnt(0)\ns_barrier']
    def exchR(tq):
        o = [f'ds_read_u16_d16_hi {v(KVR+j)}, {v(VKV)} offset:{256*(4*tq+j)}' for j in range(4)]
        return o + [f'ds_read_b128 {v(OIN,4)}, {v(VRD)} offset:{tq*TQS}']
    def final(T):
        j = T & 3; y = OIN + j; t = TT + j; o = []
        if EX_X1:
            o += [f'v_pk_mul_f32 {v(t,2)}, {v(KVR+j,2)}, {v(C0,2)} {LO}'] + R2(t)
            o += [f'v_add_f32 {v(y)}, {v(ACC+4*T)}, {v(y)}', f'v_add_f32 {v(y+1)}, {v(ACC+4*T+4)}, {v(y+1)}'] + R2(y)
            o += [f'v_pk_add_f32 {v(y,2)}, {v(y,2)}, {v(t,2)}'] + R2(y)
            o += [f'v_pk_mul_f32 {v(y,2)}, {v(M+T,2)}, {v(y,2)}'] + R2(y)
            o += [f'v_pk_mul_f32 {v(y,2)}, {v(y,2)}, {v(C1,2)} {HI}'] + R2(y)
            o += unpack(QF, QR + T // 2)
            o += [f'v_pk_add_f32 {v(y,2)}, {v(QF,2)}, {v(y,2)}']
        else:
            o += [f'v_pk_fma_f32 {v(y,2)}, {v(KVR+j,2)}, {v(C0,2)}, {v(y,2)} {LO3}']
            o += unpack(QF, QR + T // 2)
            o += [f'v_add_f32 {v(y)}, {v(ACC+4*T)}, {v(y)}', f'v_add_f32 {v(y+1)}, {v(ACC+4*T+4)}, {v(y+1)}']
            o += [f'v_pk_fma_f32 {v(y,2)}, {v(M+T,2)}, {v(y,2)}, {v(QF,2)}']
        o += [f'v_cvt_pk_bf16_f32 {v(QR+T//2)}, {v(y)}, {v(y+1)}', f'v_pk_mul_f32 {v(y,2)}, {v(y,2)}, {v(C2,2)} {LO}',
              f'v_cvt_pk_bf16_f32 {v(M+T//2)}, {v(y)}, {v(y+1)}']
        return o
    PF = 5
    if not V3: e('\n'.join(wp[:4]))
    for i in range(PF): e('\n'.join(ldB(i)))
    if not V3: e('\n'.join(wp[4:]))
    wl = [M0.w1load(ks, sl) for ks in range(16) for sl in range(3)]
    qc = []
    for T in range(0, 16, 2): qc += qchain(T)
    nq = len(qc) // 8
    plan = {T: [] for T in range(17)}
    for T in range(16):
        if T + PF < 16: plan[T] += ldB(T + PF)
        if T >= 1: plan[T] += dpp(T - 1)
    if not V3: plan[1] += wps[:2]; plan[2] += wps[2:]
    plan[4] += ['@pollF1'] + exchW(0) + epl[:4]; plan[5] += epl[4:]
    plan[8] += exchW(1); plan[12] += exchW(2)
    if not V3: plan[F2_SET] = plan[F2_SET][:plan[F2_SET].index('s_waitcnt lgkmcnt(0)\ns_barrier')] + ['@wait_tag wp', 's_waitcnt lgkmcnt(0)\ns_barrier', '@setF2'] + plan[F2_SET][plan[F2_SET].index('s_waitcnt lgkmcnt(0)\ns_barrier') + 1:]
    plan[F2_STAGE - 1] += ['@issueF2']
    plan[F2_STAGE] = plan[F2_STAGE][:-3] + ['@pollF2'] + plan[F2_STAGE][-3:]
    plan[9] += consts() + qc[:3 * nq]
    plan[10] += qc[3 * nq:6 * nq] + exchR(0)
    plan[11] += qc[6 * nq:] + final(0) + final(2) + exchR(1)
    plan[12] = final(4) + final(6) + [f'buffer_store_dwordx4 {v(M,4)}, {v(VP32)}, {WS}, s30 offen {SC}', f'buffer_store_dwordx4 {v(QR,4)}, {v(VP32)}, {WS}, s26 offen {SC}'] + plan[12]
    plan[13] += exchR(2); plan[14] += final(8) + final(10)
    wi = 0; cnt = 0
    for T in range(16):
        f = plan[T]; n = T + 1; per = -(-len(f) // n)
        if T in (4, 5, 8, 12): k.stamp({4: 34, 5: 35, 8: 14, 12: 37}[T])
        for i in range(n):
            cin = '0' if i == 0 else v(ACC + 4 * T, 4)
            e(f'v_mfma_f32_16x16x32_bf16 {v(ACC+4*T,4)}, {a(4*i,4)}, {a(64+4*(T-i),4)}, {cin}')
            for ins in f[i * per:(i + 1) * per]:
                if ins == '@pollF1' and V3: poll_wait(k, FL_0W, 13, 24); poll_wait(k, FL_0W, 214, 26)
                elif ins == '@pollF1': poll_wait(k, 1, 243, 24); poll_wait(k, FL_0W, 13, 26, 1, 16)
                elif ins == '@issueF2': poll_issue(k, 2, 243, 252)
                elif ins == '@pollF2': poll_wait(k, 2, 243, 252)
                elif ins == '@setF2': set_flag(k, 2, 212)
                elif ins.startswith('@'): k.items.append(ins)
                else: e(ins)
            cnt += 1
            if T > F2_STAGE and cnt % W1_PACE == 0: e(wl[wi]); wi += 1
    k.stamp(15)
    for ins in dpp(15) + exchW(3) + exchR(3) + final(12) + final(14): e(ins)
    e(f'buffer_store_dwordx4 {v(M+4,4)}, {v(VP32)}, {WS}, s30 offen offset:16 {SC}')
    e(f'buffer_store_dwordx4 {v(QR+4,4)}, {v(VP32)}, {WS}, s26 offen offset:16 {SC}', tag='x1')
    k.stamp(16)
    k.w1rest = wl[wi:]

G_ACC = 64; AF = 32; UU = 8; TTv = 20; ST = 112; GR = 120; SM = 124; VT = 244; ONES = 248; SF = 112

def phase3(k):
    e = k.e
    e('v_lshlrev_b32 v1, 3, v0')
    e(f's_mov_b32 s16, {WS_MODP + 3*2048}')
    for part in range(4):
        e(f'buffer_load_dwordx2 {v(64+4*part,2)}, v1, {WS}, s16 offen {SCL}')
        e(f'buffer_load_dwordx2 {v(66+4*part,2)}, v1, {WS}, s16 offen offset:2048 {SCL}')
        if part < 3: e('s_add_u32 s16, s16, 12288')
    srd(k, T1, P_B1, 2752)
    e(f'v_lshlrev_b32 v7, 3, {v(V_G)}')
    e('s_lshl_b32 s18, s13, 6'); e('s_lshl_b32 s19, s15, 5')
    B1R = 112
    e(f'buffer_load_dwordx2 {v(B1R,2)}, v7, {S4(T1)}, s18 offen')
    e(f'buffer_load_dwordx2 {v(B1R+2,2)}, v7, {S4(T1)}, s18 offen offset:32')
    e(f'buffer_load_dwordx2 {v(B1R+4,2)}, v7, {S4(T1)}, s19 offen')
    for ins in k.w1rest[:W1_BEFORE_F3]: e(ins)
    for h in range(2):
        e(f'v_pk_add_f32 {v(64+2*h,2)}, {v(64+2*h,2)}, {v(68+2*h,2)}'); e(f'v_pk_add_f32 {v(72+2*h,2)}, {v(72+2*h,2)}, {v(76+2*h,2)}')
    for h in range(2): e(f'v_pk_add_f32 {v(64+2*h,2)}, {v(64+2*h,2)}, {v(72+2*h,2)}')
    e('v_cvt_pk_bf16_f32 v64, v64, v65')
    rnd(k, 66); rnd(k, 67); e('v_add_f32 v66, 1.0, v66'); e('v_add_f32 v67, 1.0, v67'); e('v_cvt_pk_bf16_f32 v66, v66, v67')
    e('v_lshlrev_b32 v1, 2, v0'); e(f'v_add_u32 v1, {L_CB}, v1')
    e('ds_write_b32 v1, v66'); e('ds_write_b32 v1, v64 offset:1024')
    k.wait_tag('x1')
    e('s_waitcnt lgkmcnt(0)')
    e('s_barrier')
    set_flag(k, 3, 120)
    k.stamp(17)
    for ins in k.w1rest[W1_BEFORE_F3:]: e(ins)
    def w2loads(i):
        o = []
        if i == 10: o += [f's_cmp_eq_u32 {W}, 3', f's_cselect_b32 s27, {BIG}, s27']
        o += [f'buffer_load_dwordx4 {w2reg(i,j)}, {v(V_L16)}, {WS}, s27 offen offset:{1024*j} {SCL}' for j in range(4)]
        if i < 10: o += ['s_add_u32 s27, s27, 16384']
        return o
    e('s_mul_i32 s27, s9, 43'); e(f's_add_u32 s27, s27, {W}'); e('s_lshl_b32 s27, s27, 12'); e(f's_add_u32 s27, s27, {WS_W2P}')
    w2q = []
    for i in range(11): w2q += w2loads(i)
    n = 0
    while n < W2_EARLY:
        ins = w2q.pop(0); e(ins); n += ins.startswith('buffer')
    poll_issue(k, 3, 243, 252)
    k.stamp(31)
    for i in range(4): e(f'v_mov_b32 {v(ONES+i)}, 0x3f803f80')
    e('v_and_b32 v1, 1, v0'); e('v_lshlrev_b32 v1, 10, v1'); e(f'v_lshl_add_u32 v1, {v(V_G)}, 4, v1'); e(f'v_add_u32 v1, {L_CB}, v1')
    UT = 96
    for ks in range(16): e(f'ds_read_b128 {v(32+4*ks,4)}, v1 offset:{64*ks}')
    for ks in range(16):
        for sl in range(3):
            e(f'v_mfma_f32_16x16x32_bf16 {v(UT+4*sl,4)}, {w1reg(sl,ks)}, {v(32+4*ks,4)}, {"0" if ks == 0 else v(UT+4*sl,4)}')
    k.stamp(32)
    for sl in range(3):
        for h in range(2):
            for ins in unpack(TTv + 4 * sl + 2 * h, B1R + 2 * sl + h): e(ins)
    for i in range(12): e(f'v_mov_b32_dpp {v(UU+i)}, {v(UT+i)} quad_perm:[0,0,2,2] row_mask:0xf bank_mask:0xf')
    for i in range(12): e(f'v_add_f32_dpp {v(TTv+i)}, {v(UT+i)}, {v(TTv+i)} quad_perm:[1,1,3,3] row_mask:0xf bank_mask:0xf')
    e(f'v_lshrrev_b32 v1, 3, {v(V_L)}'); e('v_and_b32 v7, 7, v0'); e('v_and_b32 v112, 2, v1'); e('v_xor_b32 v7, v7, v112')
    e(f's_and_b32 s3, {W}, 1'); e('s_lshl_b32 s3, s3, 2'); e('v_xor_b32 v7, s3, v7')
    e('v_lshlrev_b32 v1, 12, v1'); e('v_lshl_add_u32 v1, v7, 4, v1')
    e(f's_lshl_b32 s16, {W}, 15'); e('s_lshl_b32 s17, s8, 7'); e('s_add_u32 s16, s16, s17'); e(f's_add_u32 s18, s16, {WS_X1T}'); e(f's_add_u32 s16, s16, {WS_X1C}')
    e(f's_lshl_b32 s17, {W}, 10')
    e(f'v_lshl_add_u32 v7, {v(V_G)}, 3, {v(V_R)}'); e('v_lshlrev_b32 v7, 7, v7'); e(f'v_lshl_add_u32 v7, {v(V_C)}, 3, v7')
    e(f'v_lshrrev_b32 v112, 1, {v(V_R)}'); e(f'v_and_b32 v113, 1, {v(V_G)}'); e('v_lshl_add_u32 v112, v113, 1, v112')
    for rt in range(4):
        e(f's_add_u32 s3, {W}, {rt}'); e('s_and_b32 s3, s3, 3')
        e('v_xor_b32 v113, s3, v112'); e(f'v_lshl_add_u32 {v(VT+rt)}, v113, 5, v7')
    e(f'v_add_u32 v240, {L_X1}, {v(VT)}')
    k.stamp(18)
    poll_wait(k, 3, 243, 252)
    e('s_barrier')
    k.stamp(19)
    for ks in range(16):
        e('s_mov_b32 m0, s17')
        e(f'buffer_load_dwordx4 v1, {WS}, s16 offen {SCL} lds', tag=f'xt{ks>>2}')
        e('s_add_u32 s16, s16, 0x20000'); e('s_add_u32 s17, s17, 4096')
    x1q = []
    for ks in range(16):
        x1q.append(f's_mov_b32 m0, s17\nbuffer_load_dwordx4 v1, {WS}, s18 offen {SCL} lds ;@tag=x1t\ns_add_u32 s18, s18, 0x20000\ns_add_u32 s17, s17, 4096')
    def aload(ks):
        o = []
        for rt in range(4):
            b = AF + 16 * (ks & 1) + 4 * rt
            o += [f'ds_read_b64_tr_b16 {v(b,2)}, {v(VT+rt)} offset:{4096*ks}', f'ds_read_b64_tr_b16 {v(b+2,2)}, {v(VT+rt)} offset:{4096*ks+512}']
        return o
    def sload(j):
        b = SF + 4 * (j & 1)
        return [f'ds_read_b64_tr_b16 {v(b,2)}, v240 offset:{4096*j}', f'ds_read_b64_tr_b16 {v(b+2,2)}, v240 offset:{4096*j+512}']
    def smfma(j):
        b = SF + 4 * (j & 1)
        return [f'v_mfma_f32_16x16x32_bf16 {v(GR,4)}, {v(b,4)}, {v(b,4)}, {"0" if j == 0 else v(GR,4)}',
                f'v_mfma_f32_16x16x32_bf16 {v(SM,4)}, {v(ONES,4)}, {v(b,4)}, {"0" if j == 0 else v(SM,4)}']
    def statfin():
        o = [f'v_cmp_eq_u32 vcc, 1, {v(V_C)}', f'v_cndmask_b32 {v(GR)}, {v(GR)}, {v(GR+1)}, vcc',
             f'v_cmp_eq_u32 vcc, 2, {v(V_C)}', f'v_cndmask_b32 {v(GR)}, {v(GR)}, {v(GR+2)}, vcc',
             f'v_cmp_eq_u32 vcc, 3, {v(V_C)}', f'v_cndmask_b32 {v(GR)}, {v(GR)}, {v(GR+3)}, vcc',
             's_mov_b32 s3, 0x3b000000',
             f'v_mul_f32 {v(SM)}, s3, {v(SM)}', f'v_mul_f32 {v(GR)}, s3, {v(GR)}',
             f'v_fma_f32 {v(GR)}, -{v(SM)}, {v(SM)}, {v(GR)}', f'v_max_f32 {v(GR)}, 0, {v(GR)}',
             f'v_cvt_pk_bf16_f32 {v(GR)}, 0, {v(GR)}', f'v_add_f32 {v(GR)}, 0x3727c5ac, {v(GR)}',
             f'v_cvt_pk_bf16_f32 {v(GR)}, 0, {v(GR)}', f'v_sqrt_f32 {v(GR)}, {v(GR)}',
             f'v_cvt_pk_bf16_f32 {v(GR)}, 0, {v(GR)}', f'v_rcp_f32 {v(GR)}, {v(GR)}',
             f'v_cvt_pk_bf16_f32 {v(SM)}, 0, {v(SM)}', f'v_mul_f32 {v(GR+1)}, -{v(SM)}, {v(GR)}',
             'v_and_b32 v241, 15, v0', f's_lshl_b32 s3, {W}, 7', f's_add_u32 s3, s3, {L_ST}', 'v_lshl_add_u32 v7, v241, 3, s3',
             's_mov_b32 s6, 0x00f0000f', 's_mov_b32 s7, 0xf0000f00',
             f's_mov_b64 exec, s[6:7]\nds_write_b64 v7, {v(GR,2)}\ns_mov_b64 exec, -1', 's_waitcnt lgkmcnt(0)\ns_barrier']
        for rt in range(4):
            o += [f's_add_u32 s3, {W}, {rt}', 's_and_b32 s3, s3, 3', 's_lshl_b32 s3, s3, 7', f's_add_u32 s3, s3, {L_ST}',
                  'v_lshl_add_u32 v7, v241, 3, s3', f'ds_read_b64 {v(ST+2*rt,2)}, v7']
        return o
    k.wait_tag('xt0')
    e('s_barrier')
    k.stamp(20)
    e('\n'.join(aload(0)))
    for ks in range(16):
        f = []
        if ks & 3 == 3 and ks < 15: f += [f'@wait_tag xt{(ks>>2)+1}', 's_barrier']
        if ks < 15: f += aload(ks + 1)
        if ks < 4: f += x1q[4 * ks:4 * ks + 4]
        if ks == 9: f = ['@wait_tag x1t', 's_barrier'] + f + sload(0) + sload(1)
        if 10 <= ks <= 13:
            g = []
            for j in range(4 * (ks - 10), 4 * (ks - 10) + 4):
                g += smfma(j) + (sload(j + 2) if j + 2 < 16 else [])
            f = ilv(f, g)
        if ks == 14: f += statfin()
        if ks in (4, 8, 12): k.stamp(40 + ks // 4)
        b0 = AF + 16 * (ks & 1)
        per = -(-len(f) // 12); i = 0
        for sl in range(3):
            if ks >= 4 and w2q and (ks * 3 + sl) % W2_SKIP:
                while w2q:
                    ins = w2q.pop(0); e(ins)
                    if ins.startswith('buffer'): break
            for rt in range(4):
                c = G_ACC + 16 * sl + 4 * rt
                e(f'v_mfma_f32_16x16x32_bf16 {v(c,4)}, {w1reg(sl,ks)}, {v(b0+4*rt,4)}, {"0" if ks == 0 else v(c,4)}')
                for ins in f[i * per:(i + 1) * per]:
                    if ins.startswith('@'): k.items.append(ins)
                    else: e(ins)
                i += 1
    k.stamp(21)
    k.w2rest = w2q
    LO = 'op_sel:[0,0,0] op_sel_hi:[1,0,1]'; HI = 'op_sel:[0,1,0] op_sel_hi:[1,1,1]'
    e('s_mul_i32 s16, s8, 43'); e('s_add_u32 s17, s16, s13'); e('s_lshl_b32 s17, s17, 12'); e(f's_add_u32 s17, s17, {WS_HP}')
    e('s_add_u32 s19, s16, s14'); e('s_lshl_b32 s19, s19, 12'); e(f's_and_b32 s3, {W}, 1'); e('s_lshl_b32 s3, s3, 3')
    e('s_add_u32 s19, s19, s3'); e(f's_add_u32 s19, s19, {WS_HP}')
    e('s_cmp_lt_u32 s14, 43'); e(f's_cselect_b32 s19, s19, {BIG}')
    for rt in range(4):
        e(f's_add_u32 s3, {W}, {rt}'); e('s_and_b32 s3, s3, 3'); e('s_lshl_b32 s3, s3, 10')
        e(f'v_add_u32 {v(VT+rt)}, s3, {v(V_L16)}')
    CT = 120; PK = AF
    for rt in range(4):
        for sl in range(3):
            c = G_ACC + 16 * sl + 4 * rt; pk = PK + 8 * rt + 2 * sl
            for h in range(2): e(f'v_pk_fma_f32 {v(CT+2*h,2)}, {v(UU+4*sl+2*h,2)}, {v(ST+2*rt,2)}, {v(TTv+4*sl+2*h,2)} {HI}')
            for h in range(2): e(f'v_pk_fma_f32 {v(c+2*h,2)}, {v(c+2*h,2)}, {v(ST+2*rt,2)}, {v(CT+2*h,2)} {LO}')
            for r in range(4): e(f'v_max_f32 {v(c+r)}, 0, {v(c+r)}')
            for h in range(2): e(f'v_pk_mul_f32 {v(c+2*h,2)}, {v(c+2*h,2)}, {v(c+2*h,2)}')
            for h in range(2): e(f'v_cvt_pk_bf16_f32 {v(pk+h)}, {v(c+2*h)}, {v(c+2*h+1)}')
            if sl == 1: e(f'buffer_store_dwordx4 {v(PK+8*rt,4)}, {v(VT+rt)}, {WS}, s17 offen {SC}')
            if sl == 2: e(f'buffer_store_dwordx2 {v(PK+8*rt+4,2)}, {v(VT+rt)}, {WS}, s19 offen {SC}', tag='hp')
    k.stamp(22)

def phase4(k):
    M0.EX_OUT = EX_OUT; M0.MAPB = MAPB; M0.H_AHEAD = H_AHEAD; M0.L_RED = L_RED; M0.X1BASE = L_X1
    M0.phase4(k)

def build_mega2():
    k = Kern(NAME); k.kidx = 0; k.wsreg = P_WS
    k.stamp_init()
    k.e('s_load_dwordx16 s[8:23], s[0:1], 0')
    k.e('s_load_dwordx16 s[24:39], s[0:1], 64')
    k.e('v_lshrrev_b32 v1, 6, v0')
    k.e(f'v_readfirstlane_b32 {W}, v1')
    k.e(f's_mov_b32 {MASK}, 0xffff0000')
    k.e('s_cmp_ge_u32 s2, 256')
    k.e('s_cbranch_scc1 MEGA_END ;@nowait')
    phase1(k); phase2(k); phase3(k); phase4(k)
    k.end()
    k.label('MEGA_END')
    k.e('s_endpgm')
    return k, dict(vgpr=512, sgpr=84, accum=256, grid=256, block=256, lds=LDS_BYTES)
```

```python
from asmgen import *
from layout import *
import mega as M0
import mega2 as M2
from mega import (NAME, srd, srd_l, S4, rnd, R2, unpack, set_flag, set_flag_wave, poll_issue, poll_wait, wave_reduce_sum, ilv,
                  P_Q, P_K, P_V, P_SK, P_SSM, P_D, P_W1, P_B1, P_W2, P_B2, P_C, P_WM, P_OUT, P_DBG, P_WS, WS, T1, T2, T3, T4, NONCE, W, MASK,
                  V_L, V_G, V_R, V_C, V_L16, WS_FL, WS_SIZE, BIG, SC, SCL, FL_0W, _lbl)
from mega2 import L_X, L_O, TQS, L_KVT, L_QT, L_WM, L_SC, L_W2R, L_W1R, LDS_BYTES
CODE_LAST_CHUNK = 0x4000
EX_KV = False
L_H4 = 85504
WM_EARLY = 4

def head(k):
    e = k.e
    e(f'v_and_b32 {v(V_L)}, 63, v0'); e(f'v_lshrrev_b32 {v(V_G)}, 4, {v(V_L)}'); e(f'v_bfe_u32 {v(V_R)}, v0, 2, 2')
    e(f'v_and_b32 {v(V_C)}, 3, v0'); e(f'v_lshlrev_b32 {v(V_L16)}, 4, {v(V_L)}')
    e('v_and_b32 v7, 7, v0'); e(f'v_lshrrev_b32 v8, 3, {v(V_L)}')
    e('s_getpc_b64 s[6:7]')
    e('s_lshr_b32 s3, s2, 3'); e('s_and_b32 s3, s3, 7'); e('s_lshl_b32 s3, s3, 2'); e(f's_add_u32 s3, s3, {W}'); e('s_lshl_b32 s3, s3, 10')
    e(f's_min_u32 s3, s3, {CODE_LAST_CHUNK}')
    e(f'v_add_u32 v9, s3, {v(V_L16)}')
    e('global_load_dwordx4 v[252:255], v9, s[6:7] ;@nocount')
    e('s_lshr_b32 s62, s2, 2'); e('s_and_b32 s63, s2, 3')
    e('s_lshr_b32 s66, s2, 3'); e('s_and_b32 s67, s2, 7')
    e('s_and_b32 s72, s2, 31'); e('s_lshr_b32 s73, s2, 5')
    e('s_lshl_b32 s74, s72, 3'); e('s_add_u32 s74, s74, s73')
    e('s_lshl_b32 s68, s66, 16'); e('s_lshl_b32 s69, s67, 7'); e('s_add_u32 s68, s68, s69'); e('s_sub_u32 s68, s68, 3072')
    e('v_lshrrev_b32 v12, 3, v0')
    e('v_lshlrev_b32 v13, 11, v12'); e('v_lshl_add_u32 v13, v7, 4, v13'); e('v_add_u32 v13, s68, v13')
    e('v_add_u32 v14, 0x400, v13'); e('v_add_u32 v15, 0x800, v13'); e('v_add_u32 v16, 0xc00, v13')
    e('v_lshlrev_b32 v17, 6, v7')
    e('s_lshr_b32 s68, s74, 1'); e('s_and_b32 s69, s74, 1'); e('s_lshl_b32 s69, s69, 3'); e(f's_lshl_b32 s3, {W}, 2')
    e('s_add_u32 s69, s69, s3'); e('s_lshl_b32 s69, s69, 7'); e('s_add_u32 s69, s69, s68'); e('s_lshl_b32 s69, s69, 10')
    e('s_lshl_b32 s68, s67, 9')
    e('v_mul_u32_u24 v18, 288, v12'); e('v_lshl_add_u32 v18, v7, 4, v18')
    e('v_mov_b32 v56, 0')
    e(f's_and_b32 s82, {W}, 1')
    e('s_waitcnt lgkmcnt(0)')
    k.stamp(1)
    srd(k, T1, P_K, 2 * MB); srd(k, T2, P_V, 2 * MB); srd(k, T3, P_SK, 4096); srd(k, T4, P_Q, 2 * MB)
    e(f's_mov_b32 s40, s{P_WS}'); e(f's_mov_b32 s41, s{P_WS+1}'); e(f's_mov_b32 s42, {WS_SIZE}'); e('s_mov_b32 s43, 0x20000')

KR = 128; VR = 148; WR = 156; SR = 172
def kv_loads(e):
    e(f'buffer_load_dwordx4 {v(KR+12,4)}, v16, {S4(T1)}, 0 offen')
    e(f'buffer_load_dwordx4 {v(KR+16,4)}, v16, {S4(T1)}, 0 offen offset:1024')
    e(f'buffer_load_dwordx4 {v(VR,4)}, v16, {S4(T2)}, 0 offen')
    e(f'buffer_load_dwordx4 {v(VR+4,4)}, v16, {S4(T2)}, 0 offen offset:1024')
    for j in range(4): e(f'buffer_load_dwordx4 {v(WR+4*j,4)}, v17, {S4(T3)}, s68 offen offset:{16*j}')
    e(f'buffer_load_dwordx4 {v(KR+0,4)}, v13, {S4(T1)}, 0 offen')
    e(f'buffer_load_dwordx4 {v(KR+4,4)}, v14, {S4(T1)}, 0 offen')
    e(f'buffer_load_dwordx4 {v(KR+8,4)}, v15, {S4(T1)}, 0 offen')
def stat_loads(e):
    for i in range(4):
        e(f'buffer_load_dwordx4 {v(SR+4*i,4)}, {v(V_L16)}, {S4(T4)}, s69 offen')
        if i < 3: e('s_add_u32 s69, s69, 0x20000')

def kv_code():
    KF = 60; VF = 70; WF = 74; P = 82; Q = 86; OUT = 92
    kvc = []; c = kvc.append
    for u in range(4):
        for j in range(4):
            for h in range(2):
                src = WR + 4 * u + 2 * h + (j >> 1)
                c(f'v_and_b32 {v(WF+2*j+h)}, {MASK}, {v(src)}' if j & 1 else f'v_lshlrev_b32 {v(WF+2*j+h)}, 16, {v(src)}')
        for i in range(5): kvc += unpack(KF + 2 * i, KR + 4 * i + u)
        for o in range(2): c(f'v_pk_mul_f32 {v(P+2*o,2)}, {v(KF+2*o,2)}, {v(WF+6,2)}')
        for t in range(1, 4):
            if EX_KV:
                for o in range(2): c(f'v_pk_mul_f32 {v(Q+2*o,2)}, {v(KF+2*(o+t),2)}, {v(WF+2*(3-t),2)}')
                kvc += R2(P) + R2(P + 2) + R2(Q) + R2(Q + 2)
                for o in range(2): c(f'v_pk_add_f32 {v(P+2*o,2)}, {v(P+2*o,2)}, {v(Q+2*o,2)}')
            else:
                for o in range(2): c(f'v_pk_fma_f32 {v(P+2*o,2)}, {v(KF+2*(o+t),2)}, {v(WF+2*(3-t),2)}, {v(P+2*o,2)}')
        for o in range(2): kvc += unpack(VF + 2 * o, VR + 4 * o + u)
        kvc += R2(P) + R2(P + 2)
        for o in range(2): c(f'v_pk_mul_f32 {v(P+2*o,2)}, {v(P+2*o,2)}, {v(VF+2*o,2)}')
        for o in range(2): c(f'v_cvt_pk_bf16_f32 {v(OUT+4*o+u)}, {v(P+2*o)}, {v(P+2*o+1)}')
    kvc += [f'ds_write_b128 v18, {v(OUT,4)} offset:{L_KVT}', f'ds_write_b128 v18, {v(OUT+4,4)} offset:{L_KVT+144}']
    return kvc

def stats_code(tag):
    st = []; c = st.append; F0 = 96; N = 4
    for i in range(N):
        for u in range(4): st += unpack(F0 + 8 * i + 2 * u, SR + 4 * i + u)
    for i in range(N):
        F = F0 + 8 * i; T = 60 + 4 * i
        c(f'v_pk_add_f32 {v(T,2)}, {v(F,2)}, {v(F+2,2)}'); c(f'v_pk_add_f32 {v(T+2,2)}, {v(F+4,2)}, {v(F+6,2)}')
        c(f'v_pk_add_f32 {v(T,2)}, {v(T,2)}, {v(T+2,2)}'); c(f'v_add_f32 {v(T)}, {v(T)}, {v(T+1)}')
    SG = [70, 71, 64, 65]
    st += ilv(*[wave_reduce_sum(60 + 4 * i, SG[i]) for i in range(N)])
    c('s_mov_b32 s3, 0x3b000000')
    for i in range(N):
        c(f'v_mov_b32 {v(84+i)}, s{SG[i]}'); c(f'v_mul_f32 {v(84+i)}, s3, {v(84+i)}')
    for i in range(N):
        F = F0 + 8 * i; T = 60 + 4 * i
        for u in range(4): c(f'v_pk_add_f32 {v(F+2*u,2)}, {v(F+2*u,2)}, {v(84+(i&2),2)} op_sel:[0,{i&1}] op_sel_hi:[1,{i&1}] neg_lo:[0,1] neg_hi:[0,1]')
        c(f'v_pk_mul_f32 {v(T,2)}, {v(F,2)}, {v(F,2)}')
        for u in range(1, 4): c(f'v_pk_fma_f32 {v(T,2)}, {v(F+2*u,2)}, {v(F+2*u,2)}, {v(T,2)}')
        c(f'v_add_f32 {v(T)}, {v(T)}, {v(T+1)}')
    st += ilv(*[wave_reduce_sum(60 + 4 * i, SG[i]) for i in range(N)])
    for i in range(N):
        c(f'v_mov_b32 {v(88+i)}, s{SG[i]}'); c(f'v_mul_f32 {v(88+i)}, s3, {v(88+i)}')
    st += R2(88) + R2(90)
    for i in range(N): c(f'v_add_f32 {v(88+i)}, 0x3727c5ac, {v(88+i)}')
    st += R2(88) + R2(90)
    for i in range(N): c(f'v_sqrt_f32 {v(88+i)}, {v(88+i)}')
    st += R2(88) + R2(90)
    for i in range(N): c(f'v_rcp_f32 {v(88+i)}, {v(88+i)}')
    st += R2(84) + R2(86)
    c('\n'.join(['s_lshl_b32 s70, s74, 5', f's_lshl_b32 s71, {W}, 4', 's_add_u32 s70, s70, s71', f's_add_u32 s70, s70, {WS_ST1}', 's_add_u32 s71, s70, 8192',
                 's_mov_b64 exec, 1', f'buffer_store_dwordx4 v[84:87], v56, {WS}, s70 offen {SC}',
                 f'buffer_store_dwordx4 v[88:91], v56, {WS}, s71 offen {SC} ;@tag={tag}', 's_mov_b64 exec, -1']))
    return st

def spread(e, code, groups):
    groups = list(groups); step = max(1, len(code) // (len(groups) + 1))
    for i, ins in enumerate(code):
        e(ins)
        if groups and (i + 1) % step == 0: e('\n'.join(groups.pop(0)))
    for g in groups: e('\n'.join(g))

def nonce_wait(k, sfx):
    e = k.e
    e('s_mov_b32 s7, 0')
    e(f'NONCE_P{sfx}: ;@keep')
    e('v_readfirstlane_b32 s60, v58'); e('v_readfirstlane_b32 s61, v59')
    e('s_add_u32 s7, s7, 1')
    e('s_cmp_gt_u32 s7, 20000')
    e(f's_cbranch_scc1 NONCE_OK{sfx} ;@nowait')
    e('s_cmp_lg_u32 s60, 0')
    e(f's_cbranch_scc1 NONCE_OK{sfx} ;@nowait')
    e(f'buffer_load_dwordx2 v[58:59], v56, {S4(T4)}, 0 offen {SC} ;@nocount')
    e('s_waitcnt vmcnt(0) ;@raw')
    e(f's_branch NONCE_P{sfx} ;@nowait')
    e(f'NONCE_OK{sfx}: ;@keep')

def ssm_group():
    g = srd_l(T1, P_SSM, 2 * MB) + ['s_lshl_b32 s64, s2, 13', f's_lshr_b32 s65, {W}, 1', 's_lshl_b32 s65, s65, 12', 's_add_u32 s64, s64, s65',
         f's_mul_i32 s65, {W}, 4160', f's_add_u32 s65, s65, {L_H4+64}', 's_mov_b32 m0, s65', f'buffer_load_dwordx4 {v(V_L16)}, {S4(T1)}, s64 offen lds']
    return [g] + [[f'buffer_load_dwordx4 {v(V_L16)}, {S4(T1)}, s64 offen offset:{1024*i} lds' + (' ;@tag=ssm' if i == 3 else '')] for i in range(1, 4)]

def conv_prep(k):
    e = k.e
    e(f's_lshr_b32 s70, {W}, 1'); e(f's_and_b32 s71, {W}, 1')
    for i in range(4): e(f'v_mov_b32 {v(88+i)}, 0')
    e(f's_mul_i32 s64, {W}, 4160'); e(f's_add_u32 s64, s64, {L_H4}'); e('s_mul_i32 s65, s70, 4288'); e(f's_add_u32 s65, s65, {L_X}')
    e('s_mul_i32 s3, s70, 8704'); e(f's_add_u32 s3, s3, {L_O+128*16}')
    e(f'v_add_u32 v92, s64, {v(V_L16)}'); e(f'v_add_u32 v93, s65, {v(V_L16)}'); e(f'v_add_u32 v94, s3, {v(V_L16)}')
    e('s_mov_b64 exec, 0xf'); e('ds_write_b128 v92, v[88:91]')
    e('s_mov_b64 exec, 0xfff'); e('ds_write_b128 v93, v[88:91]')
    e('s_mov_b64 exec, 0x3f')
    for tq in range(4): e(f'ds_write_b128 v94, v[88:91] offset:{tq*TQS}')
    e('s_mov_b64 exec, -1')
    e('s_lshl_b32 s3, s71, 5'); e('s_add_u32 s64, s64, s3'); e('s_add_u32 s64, s64, 224')
    e(f'v_sub_u32 v92, {v(V_C)}, {v(V_R)}'); e('v_lshlrev_b32 v92, 3, v92'); e(f'v_lshlrev_b32 v93, 6, {v(V_G)}')
    e('v_sub_u32 v92, v92, v93'); e('v_add_u32 v92, s64, v92')
def a_frags(k):
    k.wait_tag('ssm')
    for i in range(16):
        k.e(f'ds_read_b64_tr_b16 {a(4*i,2)}, v92 offset:{256*i+32}')
        k.e(f'ds_read_b64_tr_b16 {a(4*i+2,2)}, v92 offset:{256*i}')

def f1_addr(e):
    e('s_lshr_b32 s64, s2, 5'); e('s_lshl_b32 s64, s64, 6'); e(f'v_lshl_add_u32 v13, {v(V_L)}, 9, s64')

def pathX(k):
    e = k.e
    e(f's_or_b32 s3, s2, {W}')
    e('s_cmp_lg_u32 s3, 0')
    e('s_cbranch_scc1 NONCE_SKIP ;@nowait')
    e('s_memrealtime s[60:61]')
    e(f's_mov_b32 s76, s{P_DBG}'); e(f's_mov_b32 s77, s{P_DBG+1}'); e('s_mov_b32 s78, 256'); e('s_mov_b32 s79, 0x20000')
    e('s_waitcnt lgkmcnt(0)')
    e('s_or_b32 s60, s60, 1')
    e('v_mov_b32 v20, s60'); e('v_mov_b32 v21, s61')
    e('s_mov_b64 exec, 1')
    e(f'buffer_store_dwordx2 v[20:21], v56, s[76:79], 0 offen {SC} ;@nocount')
    e('s_mov_b64 exec, -1')
    e('NONCE_SKIP: ;@keep')
    kv_loads(e)
    e('v_lshlrev_b32 v100, 17, v8'); e('v_lshl_add_u32 v100, v7, 4, v100')
    e('s_lshl_b32 s64, s72, 2'); e('s_lshl_b32 s3, s82, 1'); e('s_add_u32 s64, s64, s3'); e('s_lshl_b32 s64, s64, 10'); e('s_lshl_b32 s65, s73, 7'); e('s_add_u32 s64, s64, s65')
    e('s_lshl_b32 s65, s82, 12'); e(f's_add_u32 s65, s65, {L_QT}')
    for i in range(4):
        e('s_mov_b32 m0, s65')
        e(f'buffer_load_dwordx4 v100, {S4(T4)}, s64 offen lds', tag='qd')
        if i < 3:
            e('s_add_u32 s64, s64, 0x100000' if i != 1 else 's_sub_u32 s64, s64, 0xffc00'); e('s_add_u32 s65, s65, 1024')
    stat_loads(e)
    srd(k, T2, P_C, 1024)
    e(f'v_lshlrev_b32 v10, 2, {v(V_L)}'); e('s_lshl_b32 s64, s63, 8')
    e(f'buffer_load_dword v11, v10, {S4(T2)}, s64 offen')
    srd(k, T4, P_DBG, 256)
    k.stamp(2)
    e('s_lshl_b32 s3, s2, 2'); e(f's_add_u32 s6, s{P_D}, s3'); e(f's_addc_u32 s7, s{P_D+1}, 0')
    e('s_load_dword s81, s[6:7], 0')
    e(f'v_lshl_add_u32 v13, {v(V_R)}, 2, {v(V_G)}'); e('v_mul_u32_u24 v13, 144, v13'); e(f'v_lshl_add_u32 v13, {v(V_C)}, 3, v13')
    e('s_lshl_b32 s64, s82, 6'); e('v_add_u32 v13, s64, v13')
    e(f'v_lshl_add_u32 v14, {v(V_G)}, 4, {v(V_R)}'); e('v_lshlrev_b32 v14, 7, v14'); e(f'v_lshl_add_u32 v14, {v(V_C)}, 3, v14'); e('v_add_u32 v14, s64, v14')
    e('v_and_b32 v15, 15, v0'); e('v_lshlrev_b32 v15, 12, v15')
    e(f'v_lshl_add_u32 v16, {v(V_G)}, 4, v15'); e(f'v_lshl_add_u32 v15, {v(V_G)}, 5, v15')
    e('s_lshl_b32 s65, s82, 17')
    e('s_lshl_b32 s75, s67, 18'); e('s_add_u32 s75, s75, s65'); e('s_lshl_b32 s3, s66, 7'); e('s_add_u32 s75, s75, s3')
    e('s_lshl_b32 s69, s73, 18'); e('s_add_u32 s69, s69, s65'); e('s_lshl_b32 s3, s72, 7'); e('s_add_u32 s69, s69, s3'); e(f's_add_u32 s69, s69, {WS_QT}')
    e('s_add_u32 s64, s75, 0x10000'); e('s_add_u32 s65, s69, 0x10000')
    kvc = kv_code()
    for ins in kvc: e(ins)
    e(f'buffer_load_dwordx2 v[58:59], v56, {S4(T4)}, 0 offen {SC}')
    k.stamp(4)
    k.wait_tag('qd')
    e('s_waitcnt lgkmcnt(0)')
    e('s_barrier')
    for cgp in range(2):
        for blk in range(2):
            for half in range(2):
                e(f'ds_read_b64_tr_b16 {v(20+8*cgp+4*blk+2*half,2)}, v13 offset:{L_KVT+32*cgp+(32*blk+16*half)*144}')
    for cgp in range(2):
        for Th in range(2):
            for half in range(2):
                e(f'ds_read_b64_tr_b16 {v(36+8*cgp+4*Th+2*half,2)}, v14 offset:{L_QT+32*cgp+(8*Th+4*half)*128}')
    for cgp in range(2):
        for blk in range(2): e(f'buffer_store_dwordx4 {v(20+8*cgp+4*blk,4)}, v16, {WS}, {"s64" if cgp else "s75"} offen offset:{64*blk} {SC}')
    for cgp in range(2):
        for Th in range(2): e(f'buffer_store_dwordx4 {v(36+8*cgp+4*Th,4)}, v15, {WS}, {"s65" if cgp else "s69"} offen offset:{16*Th} {SC}', tag='A')
    k.stamp(5)
    for g in ssm_group(): e('\n'.join(g))
    for ins in stats_code('S'): e(ins)
    for ins in unpack(14, 11): e(ins)
    e('s_mov_b32 s3, 0xbfb8aa3b')
    for i in range(2): e(f'v_mul_f32 {v(16+i)}, s3, {v(14+i)}')
    for i in range(2): e(f'v_exp_f32 {v(16+i)}, {v(16+i)}')
    for i in range(2): e(f'v_add_f32 {v(16+i)}, 1.0, {v(16+i)}')
    for i in range(2): e(f'v_rcp_f32 {v(16+i)}, {v(16+i)}')
    for i in range(2): e(f'v_mul_f32 {v(14+i)}, {v(14+i)}, {v(16+i)}')
    e('v_cvt_pk_bf16_f32 v14, v14, v15')
    e(f's_lshl_b32 s3, {W}, 8'); e(f's_add_u32 s3, s3, {L_SC}'); e('v_add_u32 v10, s3, v10'); e('ds_write_b32 v10, v14')
    e(f'v_lshl_add_u32 v10, {v(V_G)}, 4, s3')
    e(f'v_lshl_add_u32 v17, {v(V_G)}, 3, {v(V_R)}')
    e('v_lshlrev_b32 v18, 7, v17'); e(f'v_lshl_add_u32 v18, {v(V_C)}, 3, v18')
    e('s_lshl_b32 s3, s82, 6'); e(f's_add_u32 s3, s3, {L_WM}'); e('v_add_u32 v18, s3, v18')
    e(f'v_lshlrev_b32 v19, 4, {v(V_G)}')
    e('s_mul_i32 s75, s63, 12288'); e('s_lshl_b32 s3, s62, 8'); e('s_add_u32 s75, s75, s3')
    e('s_lshl_b32 s3, s82, 7'); e('s_add_u32 s75, s75, s3'); e(f's_add_u32 s75, s75, {WS_MODP}')
    e('s_cmp_lt_u32 s2, 192'); e(f's_cselect_b32 s75, s75, {BIG}')
    nonce_wait(k, 'X')
    k.stamp(8)
    k.wait_tag('A')
    e('s_barrier')
    set_flag(k, 1, 92)
    k.stamp(6)
    for ks in range(4): e(f'ds_read_b128 {v(20+4*ks,4)}, v10 offset:{64*ks}')
    for ft in range(2):
        for ks in range(4):
            e(f'ds_read_b64_tr_b16 {v(96+16*ft+4*ks,2)}, v18 offset:{4096*ks+32*ft}')
            e(f'ds_read_b64_tr_b16 {v(98+16*ft+4*ks,2)}, v18 offset:{4096*ks+512+32*ft}')
    e('s_mov_b32 s68, 0x00010001'); e('s_mov_b32 s69, 0x00010001')
    for ft in range(2):
        for ks in range(4):
            e(f'v_mfma_f32_16x16x32_bf16 {v(48+4*ft,4)}, {v(96+16*ft+4*ks,4)}, {v(20+4*ks,4)}, {"0" if ks == 0 else v(48+4*ft,4)}')
    f1_addr(e)
    e('s_mov_b64 exec, s[68:69]')
    for ft in range(2): e(f'buffer_store_dwordx4 {v(48+4*ft,4)}, v19, {WS}, s75 offen offset:{64*ft} {SC}', tag='mod')
    e('s_mov_b64 exec, -1')
    poll_issue(k, 1, 13, 58, 1, 32)
    conv_prep(k); a_frags(k)
    k.stamp(9)
    k.wait_tag('mod')
    e(set_flag_wave(FL_0W, 88))
    k.stamp(10)

def pathY(k):
    e = k.e
    kv_loads(e)
    srd(k, T4, P_DBG, 256)
    k.stamp(2)
    e('s_lshl_b32 s3, s2, 2'); e(f's_add_u32 s6, s{P_D}, s3'); e(f's_addc_u32 s7, s{P_D+1}, 0')
    e('s_load_dword s81, s[6:7], 0')
    e('v_mul_u32_u24 v9, 6144, v8'); e('v_lshl_add_u32 v9, v7, 4, v9')
    e('v_lshlrev_b32 v101, 10, v8'); e('v_lshl_add_u32 v101, v7, 4, v101')
    e(f'v_lshrrev_b32 v102, 2, {v(V_L)}'); e('v_mul_u32_u24 v102, 2752, v102'); e(f'v_lshl_add_u32 v102, {v(V_C)}, 4, v102')
    GW = [srd_l(T1, P_WM, 3 * MB) + ['s_lshl_b32 s64, s63, 1', 's_add_u32 s64, s64, s82', f's_mul_i32 s64, s64, {64*6144}', 's_lshl_b32 s65, s62, 7', 's_add_u32 s64, s64, s65',
           's_lshl_b32 s65, s82, 13', f's_add_u32 s65, s65, {L_WM}', 's_mov_b32 m0, s65', f'buffer_load_dwordx4 v9, {S4(T1)}, s64 offen lds']]
    for i in range(7):
        GW.append([f's_add_u32 s64, s64, {8*6144}', 's_add_u32 s65, s65, 1024', 's_mov_b32 m0, s65', f'buffer_load_dwordx4 v9, {S4(T1)}, s64 offen lds ;@tag=wm'])
    GP = [srd_l(T1, P_W1, 512 * 2752) + [f's_mul_i32 s64, s67, {64*2752}', 's_lshl_b32 s65, s66, 6', 's_add_u32 s64, s64, s65', 's_lshl_b32 s65, s82, 11', 's_add_u32 s64, s64, s65',
          's_lshl_b32 s65, s82, 12', f's_add_u32 s65, s65, {L_W1R}', 's_mov_b32 m0, s65', f'buffer_load_dwordx4 v102, {S4(T1)}, s64 offen lds']]
    for i in range(3):
        GP.append([f's_add_u32 s64, s64, {16*2752}', 's_add_u32 s65, s65, 1024', 's_mov_b32 m0, s65', f'buffer_load_dwordx4 v102, {S4(T1)}, s64 offen lds ;@tag=w1r'])
    GP.append(srd_l(T3, P_W2, 1376 * 1024) + ['s_lshl_b32 s64, s66, 15', 's_lshl_b32 s65, s82, 20', 's_add_u32 s64, s64, s65', 's_lshl_b32 s65, s67, 7', 's_add_u32 s64, s64, s65',
          's_lshl_b32 s65, s82, 12', f's_add_u32 s65, s65, {L_W2R}', 's_mov_b32 m0, s65', f'buffer_load_dwordx4 v101, {S4(T3)}, s64 offen lds'])
    for i in range(3):
        GP.append(['s_add_u32 s64, s64, 8192', 's_add_u32 s65, s65, 1024', 's_mov_b32 m0, s65', f'buffer_load_dwordx4 v101, {S4(T3)}, s64 offen lds ;@tag=w2r'])
    for g in GW[:WM_EARLY]: e('\n'.join(g))
    spread(e, kv_code(), GW[WM_EARLY:])
    k.stamp(4)
    e('s_waitcnt lgkmcnt(0)')
    e('s_barrier')
    k.stamp(5)
    e(f'buffer_load_dwordx2 v[58:59], v56, {S4(T4)}, 0 offen {SC}')
    for g in GP + ssm_group(): e('\n'.join(g))
    e(f'v_lshl_add_u32 v17, {v(V_G)}, 3, {v(V_R)}')
    e(f'v_lshl_add_u32 v14, {v(V_G)}, 2, {v(V_R)}'); e('v_lshlrev_b32 v14, 7, v14'); e(f'v_lshl_add_u32 v14, {v(V_C)}, 5, v14')
    e('s_lshl_b32 s64, s82, 12'); e(f's_add_u32 s65, s64, {L_W2R}'); e('v_add_u32 v14, s65, v14')
    e('v_lshlrev_b32 v15, 6, v17'); e(f'v_lshl_add_u32 v15, {v(V_C)}, 3, v15'); e(f's_add_u32 s65, s64, {L_W1R}'); e('v_add_u32 v15, s65, v15')
    e('s_lshl_b32 s64, s82, 5'); e('s_add_u32 s64, s64, s66')
    e('s_lshl_b32 s62, s64, 15'); e('s_lshl_b32 s3, s67, 11'); e('s_add_u32 s62, s62, s3'); e(f's_add_u32 s62, s62, {WS_W1P}'); e('s_add_u32 s75, s62, 16384')
    e('s_mul_i32 s63, s67, 43'); e('s_add_u32 s63, s63, s64'); e('s_lshl_b32 s63, s63, 12'); e(f's_add_u32 s63, s63, {WS_W2P}')
    e('s_cmp_lt_u32 s64, 43'); e(f's_cselect_b32 s62, s62, {BIG}'); e(f's_cselect_b32 s75, s75, {BIG}'); e(f's_cselect_b32 s63, s63, {BIG}')
    nonce_wait(k, 'Y')
    k.stamp(8)
    k.wait_tag('wm')
    e('s_barrier')
    k.stamp(6)
    conv_prep(k)
    f1_addr(e)
    k.wait_tag('w1r')
    for ft in range(2):
        for i in range(2):
            e(f'ds_read_b64_tr_b16 {v(20+8*ft+4*i,2)}, v15 offset:{2048*i+32*ft}')
            e(f'ds_read_b64_tr_b16 {v(22+8*ft+4*i,2)}, v15 offset:{2048*i+256+32*ft}')
    for ft in range(2):
        for i in range(2): e(f'buffer_store_dwordx4 {v(20+8*ft+4*i,4)}, {v(V_L16)}, {WS}, {"s75" if ft else "s62"} offen offset:{1024*i} {SC}')
    k.wait_tag('w2r')
    for dt in range(4):
        e(f'ds_read_b64_tr_b16 {v(36+4*dt,2)}, v14 offset:{8*dt}')
        e(f'ds_read_b64_tr_b16 {v(38+4*dt,2)}, v14 offset:{8*dt+2048}')
    for dt in range(4): e(f'buffer_store_dwordx4 {v(36+4*dt,4)}, {v(V_L16)}, {WS}, s63 offen offset:{1024*dt} {SC}')
    k.stamp(9)
    poll_issue(k, 1, 13, 58, 1, 32)
    a_frags(k)
    k.stamp(10)

def build_mega3():
    k = Kern(NAME); k.kidx = 0; k.wsreg = P_WS
    k.stamp_init()
    k.e('s_load_dwordx16 s[8:23], s[0:1], 0')
    k.e('s_load_dwordx16 s[24:39], s[0:1], 64')
    k.e('v_lshrrev_b32 v1, 6, v0')
    k.e(f'v_readfirstlane_b32 {W}, v1')
    k.e(f's_mov_b32 {MASK}, 0xffff0000')
    k.e('s_cmp_ge_u32 s2, 256')
    k.e('s_cbranch_scc1 MEGA_END ;@nowait')
    head(k)
    k.e(f's_cmp_ge_u32 {W}, 2')
    k.e('s_cbranch_scc1 PATH_Y')
    pathX(k); M2.phase2_head(k)
    k.e('s_branch JOIN')
    k.label('PATH_Y')
    pathY(k); M2.phase2_head(k)
    k.label('JOIN')
    k.items.append('@mark kvp')
    M2.phase2(k); M2.phase3(k); M2.phase4(k)
    k.end()
    k.label('MEGA_END')
    k.e('s_endpgm')
    return k, dict(vgpr=512, sgpr=84, accum=256, grid=256, block=256, lds=LDS_BYTES)
```
